```python
import torch

def _softmax(x, axis=-1):
    return torch.softmax(x, dim=axis)
def _gelu(x):
    return torch.nn.functional.gelu(x, approximate="tanh")
def _silu(x):
    return torch.nn.functional.silu(x)
def _sigmoid(x):
    return torch.sigmoid(x)
def _layernorm(x, axis=-1, eps=1e-5):
    m = x.mean(dim=axis, keepdim=True)
    v = x.var(dim=axis, keepdim=True, unbiased=False)
    return (x - m) / torch.sqrt(v + eps)
def _scatter_add(tgt, idx, src, axis=0):
    return tgt.clone().index_add_(axis, idx, src)
def _segment_sum(src, seg, n):
    out = torch.zeros((n,) + src.shape[1:], dtype=src.dtype)
    return out.index_add_(0, seg, src)
def _pad(x, pw):
    flat = tuple(v for pair in reversed(pw) for v in pair)
    return torch.nn.functional.pad(x, flat)

kernel_name = 'recurrent_scan__linear_attn_block__dense_activation_gelu__prompt'

def setup_inputs():

    _w = (lambda a: (lambda t: t.to(torch.bfloat16) if t.is_floating_point() else t)(torch.as_tensor(a)))
    def _A_setup():
        B, S, D = 1, 2048, 576
        return {
            "x": _w((lambda *s: torch.randn(*s, dtype=torch.bfloat16) * 0.05)(B, S, D)),
            "wqkv": _w((lambda *s: torch.randn(*s, dtype=torch.bfloat16) * 0.2)(D, 3 * D)),
            "wo": _w((lambda *s: torch.randn(*s, dtype=torch.bfloat16) * 0.2)(D, D)),
        }
    _A_in = _A_setup()

    def _B_setup():
        B, S, D, F = 1, 2048, 576, 4608
        return {
            "x": _w((lambda *s: torch.randn(*s, dtype=torch.bfloat16) * 0.05)(B, S, D)),
            "w1": _w((lambda *s: torch.randn(*s, dtype=torch.bfloat16) * 0.4)(D, F) * (D ** -0.5)),
            "b1": _w((lambda *s: torch.randn(*s, dtype=torch.bfloat16) * 12.8)(F) * 0.01),
            "w2": _w((lambda *s: torch.randn(*s, dtype=torch.bfloat16) * 0.2)(F, D) * (F ** -0.5)),
            "b2": _w((lambda *s: torch.randn(*s, dtype=torch.bfloat16) * 1.6)(D) * 0.01),
        }
    _B_in = _B_setup()

    return {
        "A_x": _A_in["x"],
        "A_wqkv": _A_in["wqkv"],
        "A_wo": _A_in["wo"],
        "B_x": _B_in["x"],
        "B_w1": _B_in["w1"],
        "B_b1": _B_in["b1"],
        "B_w2": _B_in["w2"],
        "B_b2": _B_in["b2"],
    }

def reference(A_x, A_wqkv, A_wo, B_x, B_w1, B_b1, B_w2, B_b2):
    def _A_ref(x, wqkv, wo):
        B, S, D = x.shape
        H = 32; Dh = D // H
        qkv = (lambda x, *d: x.permute(*d))((x @ wqkv).reshape(B, S, 3, H, Dh), 2, 0, 3, 1, 4)
        q, k, v = qkv[0], qkv[1], qkv[2]
        phi = lambda t: torch.where(t > 0, t + 1, torch.exp(t)) + 1e-6
        pq, pk = phi(q), phi(k)
        kv = torch.einsum("bhsd,bhse->bhde", pk, v)
        z = torch.einsum("bhsd->bhd", pk)
        num = torch.einsum("bhqd,bhde->bhqe", pq, kv)
        den = torch.einsum("bhqd,bhd->bhq", pq, z)[..., None] + 1e-6
        o = num / den
        return (lambda x, *d: x.permute(*d))(o, 0, 2, 1, 3).reshape(B, S, D) @ wo

    def _B_ref(x, w1, b1, w2, b2):
        h = torch.einsum("bsd,df->bsf", x, w1) + b1
        h = _gelu(h)
        return torch.einsum("bsf,fd->bsd", h, w2) + b2

    x = A_x
    xn = _layernorm(x, axis=-1)
    s = _A_ref(xn, A_wqkv, A_wo)
    g = _silu(_B_ref(xn, B_w1, B_b1, B_w2, B_b2))
    return x + s * g
```

```python
from common import *

LOG2E = math.log2(math.e)
GOFF = 40 << 20
vQ1 = [V(2), V(3), V(4)]
vQ4 = [V(5), V(6), V(7)]
vDQ = [V(16), V(17), V(18), V(19)]
def axf(t, i):
    s = (t >> 2) & 1; k = 2 * (t & 3) + i
    return A(224 + 4 * k, 4) if s == 0 else V(208 + 4 * k, 4)
def ACCa(tile, i): return A(32 * tile + 16 * i, 16)
TOFF = {0: 288, 1: 576, 2: 288 + 72, 3: 576 + 72, 5: 0, 6: 64}
PITCH = 960

def interleave(ms, fill, per):
    out = []; k = 0
    for m in ms:
        out.append(m); c = 0
        while k < len(fill) and c < per:
            out.append(fill[k]); c += fill[k].cost; k += 1
    return out + fill[k:]

def poll(name, off, target):
    v = vX0; s = sT[0]; c = sT[1]
    return [wait(vm=0, lg=0), valu("v_mov_b32", vX1, 0), salu("s_mov_b32", c, 0), nop(0), label(name),
            buf_ld(v, vX1, SRD_DBG, sE[0], off=off, aux="sc1"),
            salu("s_add_u32", c, c, 1), raw(f"s_cmp_ge_u32 {c}, 0x200000", SALU, rd=[c]), wait(vm=0),
            raw(f"s_cbranch_scc1 {name}_x"),
            valu("v_readfirstlane_b32", s, v), nop(3),
            raw(f"s_cmp_ge_u32 {s}, {target}", SALU, rd=[s]), raw(f"s_cbranch_scc0 {name}"), label(name + "_x")]
def signal(off):
    return [valu("v_mov_b32", vX1, 0), valu("v_mov_b32", vX2, 1), raw("s_mov_b64 exec, 1", SALU),
            I(f"buffer_atomic_add {vX2}, {vX1}, {SRD_DBG}, {sE[0]} offen offset:{off}", VMST, rd=[vX2, vX1, SRD_DBG, sE[0]]),
            raw("s_mov_b64 exec, -1", SALU)]

def phi_pair(dst, a0, a1, t):
    x0, x1, e0, e1 = t[0], t[1], t[2], t[3]
    return [valu("v_accvgpr_read_b32", x0, a0), valu("v_accvgpr_read_b32", x1, a1),
            valu("v_mul_f32", e0, f32(LOG2E), x0), valu("v_mul_f32", e1, f32(LOG2E), x1),
            trans("v_exp_f32_e64", e0, e0, extra="clamp"), trans("v_exp_f32_e64", e1, e1, extra="clamp"),
            valu("v_max_f32", x0, 0, x0), valu("v_max_f32", x1, 0, x1),
            valu("v_add_f32", x0, x0, e0), valu("v_add_f32", x1, x1, e1),
            valu("v_add_f32", x0, f32(1e-6), x0), valu("v_add_f32", x1, f32(1e-6), x1),
            valu("v_cvt_pk_bf16_f32", dst, x0, x1)]
def cvt_pair(dst, a0, a1, t):
    return [valu("v_accvgpr_read_b32", t[0], a0), valu("v_accvgpr_read_b32", t[1], a1), valu("v_cvt_pk_bf16_f32", dst, t[0], t[1])]

def build_attn(D=6, BAR=14, dma_pace=2, NPER=8, U3=2, n0=12, ypace=3, BAR2=18, verbose=True):
    sHG = sXH
    sM4 = sE[1]
    B = Builder(D, dma_pace, xf=axf, nblk=2, m0b=sM4)
    P = [wait(lg=0)]
    P += srd(SRD_X, sP[0:2], SLAB)
    post = []; a = post.append
    post += [salu("s_mov_b32", sONE, "0x3f803f80"), salu("s_mov_b32", sMASK, "0xffff0000")]
    post += srd(SRD_W1, sP[2:4], 1990656) + srd(SRD_W2, sP[4:6], 663552) + srd(SRD_WS, sP2[2:4], 64 << 20) + srd(SRD_DBG, sP2[0:2], 256)
    a(salu("s_lshl_b32", sE[0], sHG, 4))
    a(salu("s_mul_i32", sE[2], sHG, 12288)); a(salu("s_add_u32", sE[2], sE[2], hex(GOFF)))
    Z = V(248, 4)
    for j in range(4): a(valu("v_mov_b32", Z[j], 0))
    a(valu("v_lshlrev_b32", vX0, 4, vTID)); a(valu("v_mov_b32", vX1, "0x7ff00000"))
    a(I(f"v_cmp_gt_u32 vcc, 48, {vTID}", VALU, rd=[vTID], wr=["vcc"]))
    a(valu("v_cndmask_b32", vX0, vX1, vX0, "vcc", rd_extra=["vcc"]))
    a(salu("s_mul_i32", sT[0], sRB, 768)); a(salu("s_add_u32", sT[0], sT[0], sE[2]))
    zst = buf_st(Z, vX0, SRD_WS, sT[0], aux="sc1"); a(zst)
    post += lane_setup()
    a(salu("s_lshl_b32", sM4, sW, 12))
    a(valu("v_mov_b32", vT[5], "0x7ff00000"))
    for p_ in range(4):
        a(valu("v_add_u32", vX0, 64 * p_, vLANE))
        a(valu("v_mul_u32_u24", vX1, 1093, vX0)); a(valu("v_lshrrev_b32", vX1, 16, vX1))
        a(valu("v_mul_u32_u24", vX2, 60, vX1)); a(valu("v_sub_u32", vX2, vX0, vX2))
        a(valu("v_mul_u32_u24", vX3, 57, vX2)); a(valu("v_lshrrev_b32", vX3, 10, vX3))
        a(valu("v_mul_u32_u24", vT[0], 1152 - 288, vX3))
        a(valu("v_lshl_add_u32", vT[0], vX2, 4, vT[0]))
        a(valu("v_mul_u32_u24", vT[1], 3456, vX1))
        a(valu("v_add_u32", vT[0], vT[0], vT[1]))
        a(salu("s_mul_i32", sT[0], sW, 4 * 3456)); a(salu("s_add_u32", sT[0], sT[0], hex(4096 - 1024 * p_)))
        a(valu("v_add_u32", vT[0], sT[0], vT[0]))
        a(I(f"v_cmp_gt_u32 vcc, 54, {vX2}", VALU, rd=[vX2], wr=["vcc"]))
        a(valu("v_cndmask_b32", vT[0], vT[5], vT[0], "vcc", rd_extra=["vcc"]))
        a(I(f"v_cmp_gt_u32 vcc, 4, {vX1}", VALU, rd=[vX1], wr=["vcc"]))
        a(valu("v_cndmask_b32", vDQ[p_], vT[5], vT[0], "vcc", rd_extra=["vcc"]))
    a(salu("s_sub_u32", SRD_W1[0], SRD_W1[0], 4096)); a(raw(f"s_subb_u32 {SRD_W1[1]}, {SRD_W1[1]}, 0", SALU, rd=[SRD_W1[1]], wr=[SRD_W1[1]]))
    a(salu("s_mov_b32", SRD_W1[2], hex(1990656 + 4096)))
    a(salu("s_mul_i32", sB1, sHG, 288))
    l = vLANE
    a(valu("v_bfe_u32", vX0, l, 2, 2)); a(valu("v_mul_u32_u24", vX0, PITCH, vX0))
    a(valu("v_lshrrev_b32", vX1, 5, l)); a(valu("v_lshl_add_u32", vX0, vX1, 13, vX0))
    a(salu("s_mul_i32", sT[0], sC2, 144)); a(valu("v_add_u32", vX0, sT[0], vX0))
    a(valu("v_and_b32", vX1, 3, l)); a(valu("v_bfe_u32", vX2, l, 4, 1))
    a(valu("v_lshl_add_u32", vX3, vX2, 2, vX1))
    a(valu("v_lshl_add_u32", vQ1[0], vX3, 3, vX0))
    a(valu("v_and_b32", vT[0], 1, l)); a(valu("v_bfe_u32", vT[1], l, 1, 1))
    a(valu("v_mul_u32_u24", vT[2], 288, vT[0])); a(valu("v_mul_u32_u24", vT[1], 72, vT[1]))
    a(valu("v_add_u32", vT[2], vT[2], vT[1])); a(valu("v_add_u32", vT[2], 352, vT[2]))
    a(valu("v_lshlrev_b32", vT[0], 3, vT[0])); a(valu("v_add_u32", vT[0], 128, vT[0]))
    a(I(f"v_cmp_eq_u32 vcc, 1, {vX2}", VALU, rd=[vX2], wr=["vcc"]))
    a(valu("v_cndmask_b32", vT[2], vT[2], vT[0], "vcc", rd_extra=["vcc"]))
    a(valu("v_add_u32", vQ4[0], vX0, vT[2]))
    for k in (1, 2):
        a(valu("v_add_u32", vQ1[k], hex(65536 * k), vQ1[0])); a(valu("v_add_u32", vQ4[k], hex(65536 * k), vQ4[0]))
    a(salu("s_add_u32", sSTB, sHG, 12)); a(salu("s_mul_i32", sSTB, sSTB, SLAB)); a(salu("s_add_u32", sSTB, sSTB, sXB))

    M = B.M; B.xlast = {}
    for t in range(36):
        u = B.unit(("wq", t), vDQ, SRD_W1, sB1, t * 16 * 3456)
        B.xuse[t] = len(M)
        for tile in (4, 0, 1, 2, 3, 5, 6):
            def mk(av, h, u=u, tile=tile):
                ad = u.addr + h * 4096 + (TOFF[tile] if tile != 4 else 0)
                return ds_tr(av[2 * h:2 * h + 2], (vQ1 if tile != 4 else vQ4)[ad >> 16], ad & 0xffff)
            av = B.next_a(u, mk)
            for i in range(2):
                acc = ACCa(tile, i)
                B.add(mfma32(acc, axf(t, i), av, acc if t else 0), i == 0, u)
        B.xlast[t] = len(M) - 1
    bars = list(range(5, len(M), BAR))
    slots = [16384 * k for k in range(1, 6)] + [BLK + 32768, BLK + 49152]
    sc = B.make_sched(bars, slots)
    P += B.ln_prologue(post, NPER, U3, tmp=V(208, 32), maxdma=4, n0=n0)
    P += B.first_barrier()
    P += [wait_ops(vm_ops=[zst])] + signal(0)
    B.ln_streams(P)
    pro_stamp = stamp()
    body = B.finish(P, "ATTN-G1", verbose)
    P += pro_stamp
    E = []; a = E.append
    E += stamp()
    a(wait(lg=0)); a(bar())

    B2 = Builder(D, 2)
    OF = lambda t, i: A(4 * (2 * t + i), 4)
    YACC = [V(64, 32), V(96, 32), V(128, 32), V(160, 32)]
    vD3 = [V(22), V(23)]
    M2 = B2.M; pend = {}; pstart = {}
    for cp in range(9):
        acc = YACC[cp % 4]; pstart[cp] = len(M2)
        for t in range(9):
            if t < 8:
                u = B2.unit(("wo", cp, t >> 2), vD2, SRD_W2, sB2, cp * 128 + (t >> 2) * 64 * 1152); off = (t & 3) * 2048
            else:
                u = B2.unit(("wot", cp >> 2), vD3, SRD_W2, sB2, (cp >> 2) * 512 + 128 * 1152); off = (cp & 3) * 2048
            av = B2.next_a(u, B2.tr_std(u, off, 1))
            for i in range(2):
                B2.add(mfma32(acc[16 * i:16 * i + 16], av, OF(t, i), acc[16 * i:16 * i + 16] if t else 0), i == 0, u)
        pend[cp] = len(M2) - 1
    sc2 = B2.make_sched(list(range(5, len(M2) - 8, BAR2)), [])

    KVT = 0
    PQ = 48 * 1024
    AM = 0
    OIM = 0
    for k in range(8): B2.ring.put(BLK + k * UNIT)
    E += lane_setup()[:16]
    E += dma_voff(vD2, 1152)
    a(salu("s_mul_i32", sT[0], sW, 16 * 1152 - 128))
    a(valu("v_subrev_u32", vD3[0], sT[0], vD2[0])); a(valu("v_subrev_u32", vD3[1], sT[0], vD2[1]))
    a(salu("s_mul_i32", sB2, sHG, 144 * 1152))
    for k in range(8): E += B2.next_dma(8)

    PK = {n: V(64 + 16 * k, 16) for k, n in enumerate(["4A", "4B", 0, 1, 2, 3])}
    tmp = [V(34 + i) for i in range(4)]; tmp2 = [V(38 + i) for i in range(4)]
    def ep_tile(name, tile, fn):
        o = []
        for i in range(2):
            for j in range(0, 8, 2):
                x = fn(PK[name][8 * i + j], ACCa(tile, i)[2 * j], ACCa(tile, i)[2 * j + 1], tmp)
                y = fn(PK[name][8 * i + j + 1], ACCa(tile, i)[2 * j + 2], ACCa(tile, i)[2 * j + 3], tmp2)
                for p_, q_ in zip(x, y): o += [p_, q_]
        return o
    e4 = ep_tile("4A", 4, phi_pair) + ep_tile("4B", 4, cvt_pair)
    a(valu("v_and_b32", vX0, 16, vLANE)); a(I(f"v_cmp_ne_u32 {sE[4]}, 0, {vX0}".replace(str(sE[4]), "s[58:59]"), VALU, rd=[vX0], wr=[S(58, 2)]))
    a(valu("v_mov_b32", vX3, "0x3f803f80"))
    for j in range(16): e4.append(valu("v_cndmask_b32", PK["4B"][j], PK["4B"][j], vX3, S(58, 2)))
    E += e4 + ep_tile(0, 0, phi_pair) + ep_tile(1, 1, cvt_pair)
    PD = {"01": A(0, 16), "04": A(16, 16), "41": A(32, 16), "44": A(48, 16), "23": A(128, 16), "24": A(144, 16), "43": A(64, 16)}
    def prod(name, ta, tb):
        return [mfma32(PD[name], PK[ta][4 * k:4 * k + 4], PK[tb][4 * k:4 * k + 4], PD[name] if k else 0) for k in range(4)]
    m1 = prod("01", 0, 1) + prod("04", 0, "4B") + prod("41", "4A", 1) + prod("44", "4A", "4B")
    E += interleave(m1, ep_tile(2, 2, phi_pair) + ep_tile(3, 3, cvt_pair), 18)
    m2 = prod("23", 2, 3) + prod("24", 2, "4B") + prod("43", "4A", 3)
    ad = []; b = ad.append
    vK0, vK1, vK2, vK3, vK4, vK5 = [V(160 + i) for i in range(6)]
    n_ = vX0; g_ = vX1
    b(valu("v_and_b32", n_, 31, vLANE)); b(valu("v_lshrrev_b32", g_, 5, vLANE))
    b(salu("s_mul_i32", sT[0], sR2, 23680)); b(salu("s_mul_i32", sT[1], sC2, 11840)); b(salu("s_add_u32", sT[0], sT[0], sT[1]))
    b(valu("v_mul_u32_u24", vK0, 160, n_)); b(valu("v_lshl_add_u32", vK0, g_, 4, vK0)); b(valu("v_add_u32", vK0, sT[0], vK0))
    b(valu("v_mov_b32", vX3, "0x7ff00000"))
    b(valu("v_add_u32", vK2, 20 * 160, vK0))
    b(valu("v_subrev_u32", vX2, 12, n_)); b(I(f"v_cmp_gt_u32 vcc, 5, {vX2}", VALU, rd=[vX2], wr=["vcc"]))
    b(valu("v_cndmask_b32", vK2, vX3, vK2, "vcc", rd_extra=["vcc"]))
    b(valu("v_add_u32", vK1, 28 * 160, vK0))
    b(valu("v_subrev_u32", vX2, 4, n_)); b(I(f"v_cmp_gt_u32 vcc, 4, {vX2}", VALU, rd=[vX2], wr=["vcc"]))
    b(valu("v_cndmask_b32", vK1, vX3, vK1, "vcc", rd_extra=["vcc"]))
    b(I(f"v_cmp_eq_u32 vcc, 16, {n_}", VALU, rd=[n_], wr=["vcc"]))
    b(valu("v_cndmask_b32", vK1, vK1, vK2, "vcc", rd_extra=["vcc"]))
    b(I(f"v_cmp_gt_u32 vcc, 32, {vLANE}", VALU, rd=[vLANE], wr=["vcc"]))
    b(valu("v_cndmask_b32", vK3, vX3, vK0, "vcc", rd_extra=["vcc"]))
    b(valu("v_cndmask_b32", vK4, vX3, vK1, "vcc", rd_extra=["vcc"]))
    b(valu("v_cndmask_b32", vK5, vX3, vK2, "vcc", rd_extra=["vcc"]))
    vS = [[V(166 + 2 * p_ + hp) for hp in range(2)] for p_ in range(3)]
    vAMa = [V(172 + p_) for p_ in range(3)]; vAMz = V(175); vG = [V(176 + p_) for p_ in range(3)]
    b(salu("s_mul_i32", sT[2], sW, 5920))
    b(salu("s_mul_i32", sT[3], sR2, 96 * 176)); b(salu("s_mul_i32", sT[4], sC2, 48 * 176 + 72)); b(salu("s_add_u32", sT[3], sT[3], sT[4]))
    for p_ in range(3):
        e_, j_, dp_ = vT[4], vT[5], vX2
        b(valu("v_add_u32", e_, 64 * p_, vLANE))
        b(valu("v_mul_u32_u24", j_, 57, e_)); b(valu("v_lshrrev_b32", j_, 9, j_))
        b(valu("v_mul_u32_u24", dp_, 9, j_)); b(valu("v_sub_u32", dp_, e_, dp_))
        b(valu("v_mul_u32_u24", vS[p_][0], 160, j_)); b(valu("v_lshl_add_u32", vS[p_][0], dp_, 3, vS[p_][0])); b(valu("v_add_u32", vS[p_][0], sT[2], vS[p_][0]))
        b(valu("v_add_u32", vS[p_][1], 18 * 160 + 72, vS[p_][0]))
        b(valu("v_mul_u32_u24", vAMa[p_], 176, j_)); b(valu("v_lshl_add_u32", vAMa[p_], dp_, 2, vAMa[p_])); b(valu("v_add_u32", vAMa[p_], sT[3], vAMa[p_]))
        b(valu("v_lshlrev_b32", vG[p_], 2, e_))
        if p_ == 2:
            b(valu("v_add_u32", vT[3], 18 * 160, vS[p_][0]))
            b(I(f"v_cmp_eq_u32 vcc, 18, {j_}", VALU, rd=[j_], wr=["vcc"]))
            b(valu("v_cndmask_b32", vS[p_][0], vS[p_][0], vT[3], "vcc", rd_extra=["vcc"]))
            b(valu("v_add_u32", vT[3], 4 * 176, vAMa[p_]))
            b(valu("v_cndmask_b32", vAMz, vX3, vT[3], "vcc", rd_extra=["vcc"]))
            b(I(f"v_cmp_gt_u32 vcc, 19, {j_}", VALU, rd=[j_], wr=["vcc"]))
            b(valu("v_cndmask_b32", vG[p_], vX3, vG[p_], "vcc", rd_extra=["vcc"]))
            b(valu("v_cndmask_b32", vAMa[p_], vX3, vAMa[p_], "vcc", rd_extra=["vcc"]))
            b(valu("v_cndmask_b32", vS[p_][0], vLANE, vS[p_][0], "vcc", rd_extra=["vcc"]))
            b(valu("v_cndmask_b32", vS[p_][1], vLANE, vS[p_][1], "vcc", rd_extra=["vcc"]))
            b(valu("v_and_b32", vS[p_][0], -8, vS[p_][0])); b(valu("v_and_b32", vS[p_][1], -8, vS[p_][1]))
    E += interleave(m2, ad, 8)
    kw = []
    for j in range(4):
        kw.append(ds_wr(vK0, PD["01"][4 * j:4 * j + 4], KVT + 32 * j)); kw.append(ds_wr(vK1, PD["04"][4 * j:4 * j + 4], KVT + 32 * j))
    kw.append(ds_wr(vK3, PD["41"][0:4], KVT + 128)); kw.append(ds_wr(vK4, PD["44"][0:4], KVT + 128)); kw.append(ds_wr(vK5, PD["44"][4:8], KVT + 5920 + 128))
    for j in range(4):
        kw.append(ds_wr(vK0, PD["23"][4 * j:4 * j + 4], KVT + 5920 + 32 * j)); kw.append(ds_wr(vK2, PD["24"][4 * j:4 * j + 4], KVT + 5920 + 32 * j))
    kw.append(ds_wr(vK3, PD["43"][4:8], KVT + 5920 + 128))
    E += kw
    E += poll("L_pz", 0, 64)
    a(bar())
    R0 = V(96, 12); R1 = V(112, 12)
    for hp in range(2):
        for p_ in range(3):
            k = 2 * (3 * hp + p_)
            a(ds_rd(R0[k:k + 2], vS[p_][hp], KVT)); a(ds_rd(R1[k:k + 2], vS[p_][hp], KVT + 23680))
    a(salu("s_mul_i32", sE[3], sW, 3072)); a(salu("s_add_u32", sE[3], sE[3], sE[2]))
    for k in range(12): a(valu("v_add_f32", R0[k], R0[k], R1[k]))
    for hp in range(2):
        for p_ in range(3):
            for pl in range(2):
                r = R0[2 * (3 * hp + p_) + pl]
                a(I(f"buffer_atomic_add_f32 {r}, {vG[p_]}, {SRD_WS}, {sE[3]} offen offset:{hp * 1536 + pl * 768}", VMST, rd=[r, vG[p_], SRD_WS, sE[3]]))
    E += stamp()
    vPW = V(180); vPW4 = V(181); vPR = V(182)
    a(valu("v_and_b32", n_, 31, vLANE)); a(valu("v_lshrrev_b32", g_, 5, vLANE))
    a(salu("s_mul_i32", sT[0], sW, 80 * 136)); a(salu("s_add_u32", sT[0], sT[0], hex(PQ)))
    a(valu("v_mul_u32_u24", vPW, 136, n_)); a(valu("v_lshl_add_u32", vPW, g_, 3, vPW)); a(valu("v_add_u32", vPW, sT[0], vPW))
    a(valu("v_add_u32", vPW4, 48 * 136, vPW)); a(valu("v_mov_b32", vX3, "0x7ff00000"))
    a(valu("v_cndmask_b32", vPW4, vX3, vPW4, S(58, 2)))
    a(valu("v_bfe_u32", vX2, vLANE, 2, 2)); a(valu("v_lshl_add_u32", vX2, g_, 3, vX2)); a(valu("v_mul_u32_u24", vPR, 136, vX2))
    a(valu("v_and_b32", vX2, 3, vLANE)); a(valu("v_lshl_add_u32", vPR, vX2, 3, vPR))
    a(valu("v_bfe_u32", vX2, vLANE, 4, 1)); a(valu("v_lshl_add_u32", vPR, vX2, 5, vPR)); a(valu("v_add_u32", vPR, sT[0], vPR))
    def pq_writes(src, addr, doff):
        return [ds_wr(addr, src[8 * i + 2 * j:8 * i + 2 * j + 2], doff * 136 + 64 * i + 16 * j) for i in range(2) for j in range(4)]
    E += pq_writes(PK["4A"], vPW4, 0)
    PK[5] = V(128, 16); PK[6] = V(144, 16)
    E += ep_tile(5, 5, phi_pair)
    a(wait(vm=0)); E += signal(64)
    E += pq_writes(PK[5], vPW, 0)
    E += ep_tile(6, 6, phi_pair)
    E += pq_writes(PK[6], vPW, 32)
    a(wait(lg=0)); a(bar())
    for j in range(4): a(valu("v_mov_b32", Z[j], 0))
    a(valu("v_lshlrev_b32", vX0, 4, vTID))
    for k in range(9): a(ds_wr(vX0, Z, AM + 4096 * k))
    QF = lambda t, i: V(64 + 4 * (2 * t + i), 4)
    for t in range(5):
        for i in range(2):
            for h in range(2): a(ds_tr(QF(t, i)[2 * h:2 * h + 2], vPR, (16 * t + 4 * h) * 136 + 64 * i))
    E += stamp()
    E += poll("L_pd", 64, 64)
    a(bar())
    E += stamp()
    R0 = V(104, 12)
    for hp in range(2):
        for p_ in range(3):
            for pl in range(2):
                a(buf_ld(R0[2 * (3 * hp + p_) + pl], vG[p_], SRD_WS, sE[3], off=hp * 1536 + pl * 768, aux="sc1"))
    vAR = V(183); vOW = V(184); vOR = V(185); vOW2 = V(186)
    a(valu("v_and_b32", n_, 31, vLANE)); a(valu("v_lshrrev_b32", g_, 5, vLANE))
    a(salu("s_mul_i32", sT[0], sC2, 96 * 176))
    a(valu("v_mul_u32_u24", vAR, 176, n_)); a(valu("v_lshl_add_u32", vAR, g_, 4, vAR)); a(valu("v_add_u32", vAR, sT[0], vAR))
    a(salu("s_mul_i32", sT[0], sR2, 64 * 304))
    a(valu("v_mul_u32_u24", vX2, 304, n_)); a(valu("v_add_u32", vX2, sT[0], vX2))
    a(valu("v_lshl_add_u32", vOR, g_, 4, vX2))
    a(salu("s_mul_i32", sT[0], sC2, 144)); a(valu("v_lshl_add_u32", vOW, g_, 3, vX2)); a(valu("v_add_u32", vOW, sT[0], vOW))
    a(I(f"v_cmp_gt_u32 vcc, 32, {vLANE}", VALU, rd=[vLANE], wr=["vcc"]))
    a(valu("v_cndmask_b32", vOW2, vX3, vOW, "vcc", rd_extra=["vcc"]))
    for hp in range(2):
        for p_ in range(3):
            k = 2 * (3 * hp + p_)
            a(valu("v_cvt_pk_bf16_f32", R0[k], R0[k], R0[k + 1]))
            a(ds_wr(vAMa[p_], R0[k], AM + hp * (24 * 176 + 36)))
            if p_ == 2: a(ds_wr(vAMz, R0[k], AM + hp * (24 * 176 + 36)))
    a(wait(lg=0)); a(bar())
    AF = lambda tau, k: V(116 + 4 * (3 * tau + k), 4)
    for tau in range(3):
        for k in range(3): a(ds_rd(AF(tau, k), vAR, AM + tau * 32 * 176 + (tau + k) * 32))
    ND = lambda i: V(208, 48) if i == 0 else A(128, 48)
    NV = [V(208, 48), V(64, 48)]
    for tau in range(3):
        for i in range(2):
            for k in range(3):
                d = ND(i)[16 * tau:16 * tau + 16]
                a(mfma32(d, AF(tau, k), QF(tau + k, i), d if k else 0))
    a(wait(lg=0)); a(bar())
    for i in range(2):
        nv = NV[i]
        if i == 1:
            for r in range(48):
                if (r % 12) < 11: a(valu("v_accvgpr_read_b32", nv[r], ND(1)[r]))
        for hl in range(4): a(valu("v_add_f32", nv[12 * hl + 10], f32(1e-6), nv[12 * hl + 10]))
        for hl in range(4): a(trans("v_rcp_f32", nv[12 * hl + 10], nv[12 * hl + 10]))
        for hl in range(4):
            for r in range(10): a(valu("v_mul_f32", nv[12 * hl + r], nv[12 * hl + r], nv[12 * hl + 10]))
            for r in range(5): a(valu("v_cvt_pk_bf16_f32", nv[12 * hl + r], nv[12 * hl + 2 * r], nv[12 * hl + 2 * r + 1]))
        a(valu("v_add_u32", vX0, hex(OIM + i * 32 * 304), vOW))
        for hl in range(4):
            for grp in range(2):
                o0 = (36 * hl + 16 * grp) // 4
                d0, d1 = nv[12 * hl + 2 * grp], nv[12 * hl + 2 * grp + 1]
                a(I(f"ds_write2_b32 {vX0}, {d0}, {d1} offset0:{o0} offset1:{o0+1}", LDSW, rd=[vX0, d0, d1], cost=3))
            a(ds_wr(vOW2, nv[12 * hl + 4], OIM + i * 32 * 304 + 36 * hl + 32))
    a(wait(lg=0))
    E += B2.first_barrier()
    ors = []
    for t in range(9):
        for i in range(2):
            r = item(ds_rd(OF(t, i), vOR, OIM + i * 32 * 304 + 32 * t)); r.ins = r.make(); r.gap = -1; E += r.ins
            ors.append(r); sc2.to_publish.append(r)
    for k in range(5, 12): B2.ring.put(k * UNIT)
    def rel(g, done=[False]):
        if not done[0] and all(r.pub is not None for r in ors):
            done[0] = True
            for k in range(0, 5): B2.ring.put(k * UNIT)
    sc2.on_bar.append(rel)
    sts = B2.y_stream([(YACC[cp % 4], pend[cp], cp * 4096) for cp in range(9)], pace=ypace, slack=30)
    for cp in range(4, 9): B2.need(pstart[cp], sts[cp - 4])
    E += stamp()
    body2 = B2.finish(E, "ATTN-G2", verbose)
    tail = stamp()
    return P + body + E + body2 + tail + stamp_dump()
```

```python
from fw import *
from sched import *
import struct, math
def f32(x): return "0x%08x" % struct.unpack("<I", struct.pack("<f", x))[0]

SLAB = 2359296
sKA = S(0, 2); sWG = S(2)
SRD_X = S(4, 4); SRD_W1 = S(8, 4); SRD_W2 = S(12, 4); SRD_WS = S(16, 4); SRD_B = S(20, 4); SRD_DBG = S(24, 4)
sRB = S(28); sFS = S(29); sW = S(30); sR2 = S(31); sC2 = S(32); sJ8 = S(33)
sT = [S(34 + i) for i in range(6)]
sXB = S(40); sB1 = S(41); sB2 = S(42)
sM0B = S(43)
sSO = [S(44), S(45)]
sSTB = S(46); sST = [S(47), S(48)]
sC1 = S(49); sONE = S(50); sMASK = S(51); sROLE = S(52); sXH = S(53)
sE = [S(54 + i) for i in range(10)]
sP = S(64, 16); sP2 = S(80, 4)
UNIT = 8192

def srd(dst, ptr, nbytes):
    return [salu("s_mov_b32", dst[0], ptr[0]), salu("s_mov_b32", dst[1], ptr[1]),
            salu("s_mov_b32", dst[2], hex(nbytes)), salu("s_mov_b32", dst[3], "0x00020000")]

STAMP_REGS = [100, 84, 86, 88, 90, 92, 94, 96, 64, 66, 98, 68]
class Stamps:
    on = False
    op = 's_memtime'
    n = 0
def stamp():
    if not Stamps.on: return []
    r = STAMP_REGS[Stamps.n]; Stamps.n += 1
    return [I(f"{Stamps.op} s[{r}:{r+1}]", SMEM, wr=[S(r, 2)])]
def rstamp(k):
    if not Stamps.on: return []
    r = STAMP_REGS[k]
    return [I(f"s_memrealtime s[{r}:{r+1}]", SMEM, wr=[S(r, 2)])]
def stamp_dump():
    if not Stamps.on: return []
    Stamps.n = 9
    p = [wait(vm=0, lg=0)] + stamp() + rstamp(11) + [wait(lg=0)]
    for k in range(12):
        p.append(valu("v_mov_b32", V(64 + k), S(STAMP_REGS[k])))
    t = sT[0]
    p.append(salu("s_lshl_b32", t, S(2), 2)); p.append(salu("s_add_u32", t, t, sW)); p.append(salu("s_lshl_b32", t, t, 6))
    p.append(salu("s_add_u32", t, t, hex(48 << 20)))
    p.append(valu("v_mov_b32", V(63), 0))
    p.append(raw("s_mov_b64 exec, 1", SALU))
    for k in range(0, 12, 4):
        p.append(buf_st(V(64 + k, 4), V(63), SRD_WS, t, off=4 * k))
    Stamps.n = 1
    return p

vTID = V(0); vLANE = V(1)
vTR1 = [V(2), V(3), V(4)]; vTR2 = [V(5), V(6), V(7)]
vX0 = V(8)
vXR = [V(9 + i) for i in range(4)]
vHW = V(13); vHR = V(14); vBI = V(15)
vD1 = [V(16), V(17)]; vD2 = [V(18), V(19)]; vSTO = [V(20), V(21)]
vXL = [V(22 + i) for i in range(4)]
vSTAT = [V(26 + 2 * q, 2) for q in range(4)]
vT = [V(34 + i) for i in range(6)]
vC0 = V(40); vX1 = V(41); vX2 = V(42); vX3 = V(43)
NA = 5
vA = [V(44 + 4 * i, 4) for i in range(NA)]
def vRAW(u, q): return V(64 + 16 * u + 4 * q, 4)
vXW = [V(240 + i) for i in range(4)]
vPF = [V(244), V(245), V(246)]; vDUM = V(247)
def xfrag(t, i): return A(4 * (2 * t + i), 4) if t < 32 else V(64 + 4 * (2 * (t - 32) + i), 4)
BLK = 96 * 1024

def entry_lane_setup():
    p = []; a = p.append
    l = vLANE
    a(valu("v_and_b32", vLANE, 63, vTID))
    a(valu("v_and_b32", vX0, 7, vTID))
    a(valu("v_bfe_u32", vX1, vTID, 3, 3))
    a(valu("v_lshrrev_b32", vX3, 6, vTID))
    a(valu("v_lshl_add_u32", vX2, vX3, 5, vX1))
    a(valu("v_mul_u32_u24", vX2, 1152, vX2))
    a(valu("v_lshl_add_u32", vX2, vX0, 4, vX2))
    for q in range(4):
        a(salu("s_add_u32", sT[2], sROLE, q))
        a(salu("s_and_b32", sT[2], sT[2], 3))
        a(salu("s_mul_i32", sT[3], sT[2], 9216))
        a(valu("v_add_u32", vXL[q], sT[3], vX2))
    a(salu("s_mul_i32", sXB, sRB, 147456))
    return p

def lane_setup():
    p = []; a = p.append
    l = vLANE
    a(valu("v_and_b32", vX0, 3, l))
    a(valu("v_lshlrev_b32", vX0, 3, vX0))
    a(valu("v_bfe_u32", vX1, l, 4, 1))
    a(valu("v_lshl_add_u32", vX0, vX1, 5, vX0))
    a(valu("v_bfe_u32", vX1, l, 2, 2))
    a(valu("v_lshl_add_u32", vX0, vX1, 7, vX0))
    a(valu("v_bfe_u32", vX1, l, 3, 1))
    a(valu("v_xor_b32", vX1, sC2, vX1))
    a(valu("v_lshl_add_u32", vX0, vX1, 6, vX0))
    a(valu("v_lshrrev_b32", vX2, 5, l))
    a(valu("v_lshl_add_u32", vTR1[0], vX2, 10, vX0))
    a(valu("v_lshl_add_u32", vTR2[0], vX2, 9, vX0))
    for k in (1, 2):
        a(valu("v_add_u32", vTR1[k], hex(65536 * k), vTR1[0]))
        a(valu("v_add_u32", vTR2[k], hex(65536 * k), vTR2[0]))
    a(valu("v_and_b32", vX0, 7, l))
    a(valu("v_lshrrev_b32", vX1, 3, l))
    a(valu("v_xor_b32", vX3, vX1, vX0))
    a(valu("v_lshlrev_b32", vX3, 4, vX3))
    a(valu("v_and_b32", vT[0], 1, vX0))
    a(valu("v_lshl_add_u32", vX3, vT[0], 9, vX3))
    a(valu("v_lshrrev_b32", vT[0], 1, vX0))
    a(valu("v_lshl_add_u32", vX3, vT[0], 10, vX3))
    a(salu("s_lshl_b32", sT[0], sW, 12))
    a(salu("s_add_u32", sT[0], sT[0], hex(BLK)))
    for q in range(4):
        a(salu("s_add_u32", sT[2], sROLE, q))
        a(salu("s_and_b32", sT[2], sT[2], 3))
        a(salu("s_lshl_b32", sT[4], sT[2], 7))
        a(salu("s_add_u32", sT[4], sT[4], sT[0]))
        a(valu("v_add_u32", vXW[q], sT[4], vX3))
    a(valu("v_lshlrev_b32", vX1, 4, l))
    a(valu("v_add_u32", vHW, sT[0], vX1))
    a(salu("s_lshl_b32", sT[0], sR2, 13))
    a(salu("s_add_u32", sT[0], sT[0], hex(BLK)))
    a(valu("v_add_u32", vHR, sT[0], vX1))
    for tt in range(4):
        a(valu("v_add_u32", vX3, 2 * tt, vX2))
        a(valu("v_xor_b32", vX3, l, vX3))
        a(valu("v_lshl_add_u32", vXR[tt], vX3, 4, sT[0]))
        if tt < 3: a(salu("s_add_u32", sT[0], sT[0], 1024))
    a(salu("s_mul_i32", sT[0], sR2, 2 * 36864))
    a(salu("s_lshl_b32", sT[1], sC2, 11))
    a(salu("s_add_u32", sT[0], sT[0], sT[1]))
    a(valu("v_add_u32", vSTO[0], sT[0], vX1))
    a(valu("v_add_u32", vSTO[1], 36864, vSTO[0]))
    a(salu("s_lshl_b32", sM0B, sW, 11))
    return p

def dma_voff(dst, stride):
    p = []; a = p.append
    a(valu("v_bfe_u32", vX2, vTID, 3, 3))
    a(valu("v_lshrrev_b32", vX1, 6, vTID))
    a(valu("v_lshl_add_u32", vX2, vX1, 4, vX2))
    a(valu("v_mul_u32_u24", vX2, stride, vX2))
    a(valu("v_bfe_u32", vX1, vTID, 4, 1))
    a(valu("v_lshlrev_b32", vX1, 2, vX1))
    a(valu("v_and_b32", vX0, 7, vTID))
    a(valu("v_xor_b32", vX0, vX0, vX1))
    a(valu("v_lshl_add_u32", dst[0], vX0, 4, vX2))
    a(valu("v_add_u32", dst[1], hex(8 * stride - 1024), dst[0]))
    return p

def touch(voff, srd_, soff, off=0):
    i = buf_ld(vDUM, voff, srd_, soff, off=off); i.wr = []
    return i

def norm_plain(r, st, t0, t1):
    return [valu("v_lshlrev_b32", t0, 16, r), valu("v_and_b32", t1, sMASK, r),
            valu("v_fma_f32", t0, t0, st[0], st[1]), valu("v_fma_f32", t1, t1, st[0], st[1]),
            valu("v_cvt_pk_bf16_f32", r, t0, t1)]
def norm_quad_pk(r, st, tp):
    p = []
    for j in range(4): p += [valu("v_lshlrev_b32", tp[2 * j], 16, r[j]), valu("v_and_b32", tp[2 * j + 1], sMASK, r[j])]
    for j in range(4): p.append(valu("v_pk_fma_f32", tp[2 * j:2 * j + 2], tp[2 * j:2 * j + 2], st, st, extra="op_sel:[0,0,1] op_sel_hi:[1,0,1]"))
    for j in range(4): p.append(valu("v_cvt_pk_bf16_f32", r[j], tp[2 * j], tp[2 * j + 1]))
    return p

def stats_finish(q, S4, Q4):
    p = []; a = p.append
    a(valu("v_add_f32", S4[0], S4[0], S4[1])); a(valu("v_add_f32", Q4[0], Q4[0], Q4[1]))
    a(valu("v_add_f32", S4[2], S4[2], S4[3])); a(valu("v_add_f32", Q4[2], Q4[2], Q4[3]))
    a(valu("v_add_f32", S4[0], S4[0], S4[2])); a(valu("v_add_f32", Q4[0], Q4[0], Q4[2]))
    s, qq = S4[0], Q4[0]
    for ctl in ("quad_perm:[1,0,3,2]", "quad_perm:[2,3,0,1]", "row_half_mirror"):
        for r in (s, qq):
            a(valu("v_add_f32_dpp", r, r, r, extra=f"{ctl} row_mask:0xf bank_mask:0xf", dpp=True))
    st = vSTAT[q]
    a(valu("v_mul_f32", s, f32(1.0 / 576), s))
    a(valu("v_mul_f32", qq, f32(1.0 / 576), qq))
    a(I(f"v_fma_f32 {qq}, -{s}, {s}, {qq}", VALU, rd=[s, qq], wr=[qq]))
    a(valu("v_max_f32", qq, 0, qq))
    a(valu("v_add_f32", qq, f32(1e-5), qq))
    a(trans("v_rsq_f32", st[0], qq))
    a(I(f"v_mul_f32_e64 {st[1]}, -{s}, {st[0]}", VALU, rd=[s, st[0]], wr=[st[1]]))
    return p

class Unit:
    def __init__(self, name, voff, srd_, sbase, const, nun=1):
        self.name, self.voff, self.srd, self.sbase, self.const = name, voff, srd_, sbase, const
        self.addr = None; self.first_read = 10**9; self.last_mfma = -1; self.dma_item = None

class Builder:
    def __init__(self, D=6, dma_pace=3, xf=None, nblk=4, m0b=None):
        self.xf = xf or xfrag; self.nblk = nblk; self.m0b = m0b or sM0B; self.xlast = None
        self.M = []; self.afr = []; self.units = []; self.umap = {}
        self.D = D; self.dma_pace = dma_pace
        self.needs = {}; self.xuse = {}
        self.nfrag = 0; self.blackout = []
    def unit(self, key, *args):
        if key not in self.umap:
            self.umap[key] = Unit(key, *args); self.units.append(self.umap[key])
        return self.umap[key]
    def next_a(self, unit, mk_reads):
        a = vA[self.nfrag % NA]; self.nfrag += 1
        self.afr.append((unit, mk_reads, a, len(self.M)))
        return a
    def add(self, m, new_a=False, unit=None):
        if new_a: m.tag = "newA"
        if unit is not None: unit.last_mfma = len(self.M)
        self.M.append(m)
    def need(self, idx, its): self.needs.setdefault(idx, []).extend(its)
    def tr_std(self, unit, off, pat):
        def mk(a, h):
            ad = unit.addr + off + (h * 512 if pat == 1 else h * 1024)
            return ds_tr(a[2 * h:2 * h + 2], (vTR1 if pat == 1 else vTR2)[ad >> 16], ad & 0xffff)
        return mk
    def make_sched(self, bars, ring_units):
        sc = self.sc = Sched(self.M); sc.bars = set(bars)
        self.pro_reads = []
        for f, (u, mk, a, idx) in enumerate(self.afr):
            for h in range(2):
                def mk2(u=u, mk=mk, a=a, h=h):
                    assert u.addr is not None and u.dma_item.pub is not None, (u.name, sc.gap)
                    return [mk(a, h)]
                g = idx - self.D + h
                it = Item(mk2, MEM, 1, name=f"A{f}.{h}")
                u.first_read = min(u.first_read, g)
                if g < 0: self.pro_reads.append(it)
                else: sc.fix(g, it)
        ring = self.ring = LDSAlloc(ring_units); live = []
        def on_bar(g):
            for u in list(live):
                if u.last_mfma <= g:
                    live.remove(u); ring.put(u.addr)
        sc.on_bar.append(on_bar)
        sb = sorted(sc.bars)
        def unit_items(u, n):
            so = sSO[n & 1]
            i1 = item(salu("s_add_u32", so, u.sbase, hex(u.const)), name=f"so{u.name}")
            def mk_m0(u=u):
                u.addr = ring.get(); live.append(u)
                return [salu("s_add_u32", "m0", self.m0b, hex(u.addr))]
            i2 = Item(mk_m0, PRE, 1, cond=lambda g: ring.avail(), name=f"m0{u.name}")
            its = [i1, i2]
            pb = [b for b in sb if b <= u.first_read]
            dl = (pb[-1] if pb else -1) - 12
            i2.deadline = i1.deadline = dl - len(u.voff)
            for k, vo in enumerate(u.voff):
                d = dma(vo, u.srd, so, off=1024 * k)
                i3 = Item(lambda d=d: [d], MEM, 2.0, name=f"dma{u.name}.{k}", deadline=dl - len(u.voff) + 1 + k)
                i3.cond = lambda g, i2=i2, i3=i3: i2.gap is not None and i2.gap < g and (g >= i3.deadline or not any(a <= g < b for a, b in self.blackout))
                its.append(i3)
            u.dma_item = its[-1]
            return its
        self.allu = [unit_items(u, n) for n, u in enumerate(self.units)]
        self.npro = 0
        return sc
    def next_dma(self, maxn=10):
        if self.npro >= len(self.allu) or not self.ring.avail() or self.npro >= maxn: return []
        its = self.allu[self.npro]; self.npro += 1
        o = []
        for it in its:
            it.ins = it.make(); it.gap = -1; o += it.ins
        return o
    def ln_prologue(self, post, NPER=8, U3=2, tmp=V(208, 32), maxdma=10, n0=12):
        p = []; a = p.append
        loads = [buf_ld(vRAW(u, q), vXL[q], SRD_X, sXB, off=128 * u) for q in range(4) for u in range(9)]
        ptr = 0
        def issue(n=1):
            nonlocal ptr
            for _ in range(n):
                if ptr < 36: a(loads[ptr]); ptr += 1
                else: p.extend(self.next_dma(maxdma))
        issue(n0)
        p.extend(post)
        self.ln_w = {}; self.ln_done = set()
        S4, Q4, tp = tmp[0:4], tmp[4:8], tmp[8:16]
        cur = []
        avail = []
        pend_w = []
        def fill(n):
            nonlocal cur
            while n > 0:
                if not cur:
                    if not avail: return
                    avail.sort(); u, q = avail.pop(0)
                    cur = norm_quad_pk(vRAW(u, q), vSTAT[q], tp) + [(u, q)]
                x = cur.pop(0)
                if isinstance(x, tuple):
                    self.ln_done.add(x)
                    if x[0] < self.nblk: pend_w.append(x)
                else: a(x); n -= 1
                if cur and isinstance(cur[0], tuple):
                    x = cur.pop(0); self.ln_done.add(x)
                    if x[0] < self.nblk: pend_w.append(x)
        def flush_w():
            for (u, q) in pend_w:
                w = ds_wr(vXW[q], vRAW(u, q), u * 16384); a(w); self.ln_w[(u, q)] = w
            pend_w.clear()
        for q in range(4):
            for u in range(9):
                r = vRAW(u, q)
                a(wait_ops(regs_ready=[r]))
                issue(1); flush_w()
                for j in range(4):
                    a(valu("v_dot2_f32_bf16", S4[j], r[j], sONE, S4[j] if u else 0))
                    a(valu("v_dot2_f32_bf16", Q4[j], r[j], r[j], Q4[j] if u else 0))
                fill(NPER)
            if q == 3: p.extend(stamp())
            p.extend(stats_finish(q, S4, Q4))
            avail += [(u, q) for u in range(9)]
        if cur: fill(len(cur) - 1)
        while any((u, q) not in self.ln_done for u in range(U3) for q in range(4)):
            fill(16); flush_w(); issue(1)
        flush_w()
        self.U3 = U3
        return p
    def first_barrier(self, extra_lg=()):
        sc = self.sc
        fb = min(sc.bars); vm0 = []
        for u in self.units:
            if u.first_read < fb:
                assert u.dma_item.gap is not None, u.name
                vm0 += u.dma_item.ins; u.dma_item.pub = -1
        sc.dma_need = sorted([(u.first_read, u.dma_item) for u in self.units if u.dma_item.pub is None], key=lambda x: x[0])
        sc.add(Stream("dma", [it for its in self.allu[self.npro:] for it in its], pace=self.dma_pace, prio=True))
        return [wait_ops(vm_ops=vm0, lg_ops=list(extra_lg) + list(getattr(self, 'ln_w', {}).values())), bar()]
    def ln_streams(self, P):
        sc = self.sc; xuse = self.xuse
        sb = sorted(sc.bars)
        xr_items = {}; ln_items = []; xr_stream = []
        pub = lambda it, g: sc.to_publish.append(it)
        for u in range(9):
            nb = self.nblk; b = u % nb; wits = []
            pb = [x for x in sb if x <= xuse[4 * u] - 4]
            dl = (pb[-1] if pb else 0) - 2
            for q in range(4):
                if (u, q) in self.ln_w: continue
                if (u, q) not in self.ln_done:
                    for j in range(4):
                        for ins in norm_plain(vRAW(u, q)[j], vSTAT[q], vT[2], vT[3]):
                            ln_items.append(item(ins, deadline=dl - 1 - (3 - q), name=f"ln{u}"))
                w = item(ds_wr(vXW[q], vRAW(u, q), b * 16384), deadline=dl - (3 - q), name=f"xw{u}.{q}")
                if u >= nb:
                    w.cond = lambda g, prev=xr_items[u - nb]: all(r.pub is not None for r in prev)
                w.on_emit = pub
                wits.append(w); ln_items.append(w)
            rs = []
            for tt in range(4):
                for i in range(2):
                    r = item(ds_rd(self.xf(4 * u + tt, i), vXR[tt], b * 16384 + i * 4096), deadline=xuse[4 * u + tt] - 3, name=f"xr{u}.{tt}.{i}")
                    r.cond = lambda g, wits=wits: all(w.pub is not None for w in wits)
                    r.on_emit = pub
                    if self.xlast is not None and u >= 2: r.earliest = self.xlast[4 * (u - 2) + tt]
                    rs.append(r); self.need(xuse[4 * u + tt], [r])
            xr_items[u] = rs
            if u < self.U3:
                for r in rs:
                    r.ins = r.make(); r.gap = -1; P += r.ins; sc.to_publish.append(r)
            else: xr_stream += rs
        sc.add(Stream("ln", ln_items)); sc.add(Stream("xr", xr_stream))
        self.ln_items = ln_items
        return {b: xr_items[max(u for u in range(9) if u % self.nblk == b)] for b in range(self.nblk)}
    def release_blocks(self, last_user):
        pend = dict(last_user)
        def chk(g):
            for b, rs in list(pend.items()):
                if all(r.pub is not None for r in rs):
                    del pend[b]
                    for k in range(2): self.ring.put(BLK + b * 16384 + k * UNIT)
        self.sc.on_bar.append(chk)
    def y_stream(self, passes, pace=3, slack=40):
        y_items = []; res = []
        for n, (acc, end, off) in enumerate(passes):
            st = sST[n & 1]; dl = end + slack
            y_items.append(item(salu("s_add_u32", st, sSTB, hex(off)), earliest=end - 4, deadline=dl, name="yso"))
            sts = []
            for i in range(2):
                for h in range(2):
                    b = 16 * i + 8 * h
                    for j in range(4):
                        y_items.append(item(valu("v_cvt_pk_bf16_f32", acc[b + j], acc[b + 2 * j], acc[b + 2 * j + 1]),
                                            earliest=end + 2, deadline=dl, name=f"ycvt{n}"))
                    s_ = item(buf_st(acc[b:b + 4], vSTO[i], SRD_WS, st, off=h * 1024, aux="sc1"), deadline=dl, name=f"yst{n}")
                    s_.cost = 4
                    y_items.append(s_); sts.append(s_)
            res.append(sts)
        self.sc.add(Stream("y", y_items, pace=pace))
        return res
    def finish(self, P, name, verbose=True):
        for it in self.pro_reads:
            it.ins = it.make(); it.gap = -1; P += it.ins
        body = self.sc.run()
        for idx, its in self.needs.items():
            for it in its:
                assert it.gap is not None and it.gap < idx, f"need {it.name} before mfma {idx}, got {it.gap}"
        if verbose: print(f"{name}: mfma={len(self.M)} bars={len(self.sc.bars)} overflow_slots={self.sc.overflow:.0f} late={len(self.sc.late)}", self.sc.late[:4])
        return body
```

```python
from common import *

ACC = [V(208, 32), V(176, 32), V(144, 32), V(112, 32), V(64, 32)]
def hfrag(kk, i): return A(4 * (2 * kk + i), 4)
GC0 = -2.0 * math.sqrt(2.0 / math.pi) * math.log2(math.e)
GC1 = GC0 * 0.044715

def gelu_items(acc, i, q):
    out = []
    b = 16 * i + 8 * q
    t0, t1 = vT[0], vT[1]
    for j in range(4):
        x0, x1 = acc[b + 2 * j], acc[b + 2 * j + 1]
        out += [valu("v_mul_f32", t0, x0, x0), valu("v_mul_f32", t1, x1, x1),
                valu("v_fma_f32", t0, t0, sC1, vC0), valu("v_fma_f32", t1, t1, sC1, vC0),
                valu("v_mul_f32", t0, x0, t0), valu("v_mul_f32", t1, x1, t1),
                trans("v_exp_f32", t0, t0), trans("v_exp_f32", t1, t1),
                valu("v_add_f32", t0, "1.0", t0), valu("v_add_f32", t1, "1.0", t1),
                trans("v_rcp_f32", t0, t0), trans("v_rcp_f32", t1, t1),
                valu("v_mul_f32", t0, x0, t0), valu("v_mul_f32", t1, x1, t1),
                valu("v_cvt_pk_bf16_f32", acc[b + j], t0, t1)]
    return out

def ffn_pre():
    p = []; a = p.append
    a(salu("s_mul_i32", sFS, sXH, 3)); a(salu("s_add_u32", sFS, sFS, sROLE)); a(salu("s_sub_u32", sFS, sFS, 1))
    a(salu("s_mul_i32", sB1, sFS, 768))
    return p

def build_ffn(N1=2, D=6, BARL=24, BARS=8, BARM=12, dma_pace=3, NPER=8, U3=2, ypace=3, pf=3, pf1=0, pf1b=80, pf2=170, pf2b=260, pause=40, n0=12, verbose=True):
    B = Builder(D, dma_pace)
    P = []
    P += srd(SRD_X, sP[0:2], SLAB) + srd(SRD_W1, sP[8:10], 5308416)
    post = []
    post += [salu("s_mov_b32", sONE, "0x3f803f80"), salu("s_mov_b32", sMASK, "0xffff0000")]
    post += srd(SRD_B, sP[10:12], 9216)
    vB = V(252); vB2 = V(254, 2)
    post.append(valu("v_lshlrev_b32", vX0, 2, vTID))
    post.append(buf_ld(vB, vX0, SRD_B, sB1))
    post += srd(SRD_W2, sP[12:14], 5308416) + srd(SRD_WS, sP2[2:4], 64 << 20)
    post += lane_setup() + dma_voff(vD1, 9216) + dma_voff(vD2, 1152)
    post.append(salu("s_mul_i32", sB2, sFS, 384 * 1152))
    post.append(salu("s_mul_i32", sSTB, sFS, SLAB))
    post.append(salu("s_add_u32", sSTB, sSTB, sXB))
    post.append(salu("s_mov_b32", sC1, f32(GC1)))
    post.append(valu("v_mov_b32", vC0, f32(GC0)))
    post.append(valu("v_lshrrev_b32", vX1, 5, vLANE))
    post.append(salu("s_lshl_b32", sT[0], sC2, 7))
    post.append(valu("v_lshl_add_u32", vBI, vX1, 4, sT[0]))
    post.append(valu("v_mul_u32_u24", vX0, 57, vLANE)); post.append(valu("v_lshrrev_b32", vX0, 10, vX0))
    post.append(valu("v_mul_u32_u24", vX1, 18, vX0)); post.append(valu("v_sub_u32", vX1, vLANE, vX1))
    post.append(salu("s_mul_i32", sT[0], sW, 144)); post.append(salu("s_add_u32", sT[0], sT[0], sJ8))
    post.append(valu("v_lshl_add_u32", vX1, vX1, 3, sT[0])); post.append(valu("v_mul_u32_u24", vX1, 9216, vX1))
    post.append(valu("v_lshl_add_u32", vPF[0], vX0, 7, vX1))
    post.append(valu("v_mov_b32", vX2, "0x7ff00000"))
    post.append(I(f"v_cmp_gt_u32 vcc, 54, {vLANE}", VALU, rd=[vLANE], wr=["vcc"]))
    post.append(valu("v_cndmask_b32", vPF[0], vX2, vPF[0], "vcc", rd_extra=["vcc"]))
    post.append(salu("s_mul_i32", sT[0], sJ8, 55296)); post.append(salu("s_mul_i32", sT[1], sW, 13824)); post.append(salu("s_add_u32", sT[0], sT[0], sT[1]))
    post.append(valu("v_lshl_add_u32", vPF[1], vLANE, 7, sT[0]))
    post.append(valu("v_cndmask_b32", vPF[1], vX2, vPF[1], "vcc", rd_extra=["vcc"]))
    post.append(valu("v_add_u32", vPF[2], 6912, vPF[1]))

    M = B.M
    step_start = {}; step_end = {}; huse = {}
    def pair(u, off, pat, acc, bfr, first, cinit):
        a = B.next_a(u, B.tr_std(u, off, pat))
        if first and cinit == "bias":
            m0 = mfma32(acc[16:32], a, bfr[1], acc[0:16]); m1 = mfma32(acc[0:16], a, bfr[0], acc[0:16])
        elif first:
            m0 = mfma32(acc[0:16], a, bfr[0], 0); m1 = mfma32(acc[16:32], a, bfr[1], 0)
        else:
            m0 = mfma32(acc[0:16], a, bfr[0], acc[0:16]); m1 = mfma32(acc[16:32], a, bfr[1], acc[16:32])
        B.add(m0, True); B.add(m1, False, u)
    for s in range(6):
        step_start[s] = len(M)
        for t in range(36):
            hb = t >> 2
            u = B.unit(("w1", s, hb), vD1, SRD_W1, sB1, s * 128 + hb * 64 * 9216)
            B.xuse.setdefault(t, len(M))
            pair(u, (t & 3) * 2048, 1, ACC[s % 3], [xfrag(t, 0), xfrag(t, 1)], t == 0, "bias")
        step_end[s] = len(M) - 1
    pacc = {}; order = [0, 3, 4, 1, 2]
    pass_end = {}; pass_start = {}
    groups = [list(range(N1))] + [[cp] for cp in range(N1, 9)]
    for grp in groups:
        for cp in grp: pacc[cp] = ACC[order[cp % 5]]; pass_start[cp] = len(M)
        for kk in range(24):
            for cp in grp:
                u = B.unit(("w2", cp, kk >> 2), vD2, SRD_W2, sB2, cp * 128 + (kk >> 2) * 64 * 1152)
                huse.setdefault(kk, len(M))
                pair(u, (kk & 3) * 2048, 2, pacc[cp], [hfrag(kk, 0), hfrag(kk, 1)], kk == 0, "zero")
                pass_end[cp] = len(M) - 1
    bars = list(range(3, step_end[0], BARS))
    g = bars[-1] + BARS
    while g < step_start[5]: bars.append(g); g += BARL
    g = step_start[5] + 11 if g - BARL < step_start[5] + 5 else g
    while g < pass_end[N1 - 1]: bars.append(g); g += BARM
    while g < len(M) - 8: bars.append(g); g += BARL
    sc = B.make_sched(bars, [k * UNIT for k in range(1, 12)])
    sb = sorted(bars)
    P += B.ln_prologue(post, NPER, U3, n0=n0)
    P.append(valu("v_lshlrev_b32", vB2[0], 16, vB)); P.append(valu("v_and_b32", vB2[1], sMASK, vB))
    P.append(valu("v_lshlrev_b32", vX0, 3, vTID))
    bw = ds_wr(vX0, vB2, 0); P.append(bw)
    P += B.first_barrier([bw])
    last_user = B.ln_streams(P)
    pub = lambda it, g: sc.to_publish.append(it)
    h_w = {}; g_items = []; hr_items = []; bias_items = []
    for s in range(6):
        acc = ACC[s % 3]
        b = (s + 1) % 4
        prev = last_user[b]
        ws_ = []
        nxt = step_start[s + 3] - 6 if s + 3 < 6 else 10**9
        pb = [x for x in sb if x <= huse[4 * s] - 4]
        dl = min(nxt, pb[-1] - 3)
        if s + 1 < 6: dl = min(dl, step_end[s + 1] + 24)
        for i in range(2):
            for q in range(2):
                last_m = step_end[s] - (1 - i)
                d2 = dl - 3 * (3 - (2 * i + q))
                for ins in gelu_items(acc, i, q): g_items.append(item(ins, earliest=last_m + 2, deadline=d2 - 1, name=f"g{s}"))
                w = item(ds_wr(vHW, acc[16 * i + 8 * q:16 * i + 8 * q + 4], b * 16384 + i * 2048 + q * 1024), deadline=d2, name=f"hw{s}.{i}.{q}")
                w.cond = lambda g, prev=prev: all(r.pub is not None for r in prev)
                w.on_emit = pub
                ws_.append(w); g_items.append(w)
        h_w[s] = ws_
        rs = []
        for c in range(2):
            for q in range(2):
                kk = 4 * s + 2 * c + q
                for i in range(2):
                    r = item(ds_rd(hfrag(kk, i), vHR, b * 16384 + c * 4096 + i * 2048 + q * 1024),
                             earliest=step_start[5] + 2 * kk + 1, deadline=huse[kk] - 3, name=f"hr{kk}.{i}")
                    r.cond = lambda g, ws_=ws_: all(w.pub is not None for w in ws_)
                    r.on_emit = pub
                    rs.append(r); B.need(huse[kk], [r])
        hr_items += rs
        last_user[b] = rs
        if s + 4 < 6:
            for r in rs: r.deadline = min(r.deadline, step_start[5] + 9 + 20 * s)
    B.release_blocks(last_user)
    for s in range(6):
        acc = ACC[s % 3]
        for j in range(4):
            r = item(ds_rd(acc[4 * j:4 * j + 4], vBI, s * 256 + j * 32), deadline=step_start[s] - 3, name=f"bias{s}")
            if s >= 3: r.cond = lambda g, w=h_w[s - 3]: all(x.gap is not None and x.gap < g for x in w)
            elif s >= 1: r.cond = lambda g: all(x.gap is not None and x.gap < g for x in B.ln_items)
            r.earliest = step_start[s] - 24
            if s == 0:
                r.ins = r.make(); r.gap = -1; P += r.ins
            else:
                bias_items.append(r); B.need(step_start[s], [r])
    sc.add(Stream("bias", bias_items)); sc.add(Stream("gelu", g_items)); sc.add(Stream("hr", hr_items))
    sts = B.y_stream([(pacc[cp], pass_end[cp], cp * 4096) for cp in range(9)], pace=ypace)
    for cp in range(9):
        if cp >= 5: B.need(pass_start[cp], sts[cp - 5])
        else:
            o = order[cp % 5]
            if o < 3: B.need(pass_start[cp], h_w[max(s for s in range(6) if s % 3 == o)])
    if pf & 1:
        sc.fix(pf1, item(touch(vPF[0], SRD_W1, sB1, 0))); sc.fix(pf1b, item(touch(vPF[0], SRD_W1, sB1, 384)))
    if pf & 2:
        sc.fix(pf2, item(touch(vPF[1], SRD_W2, sB2))); sc.fix(pf2b, item(touch(vPF[2], SRD_W2, sB2)))
    B.blackout = [(g, g + pause) for g in ([pf1, pf1b] if pf & 1 else []) + ([pf2, pf2b] if pf & 2 else [])]
    pro_stamp = stamp()
    for g in (step_end[0], step_end[2], step_end[5], pass_end[N1 - 1], pass_end[5], len(M) - 1):
        for ins in stamp(): sc.fix(g, Item(lambda ins=ins: [ins], PRE, 1))
    body = B.finish(P, "FFN", verbose)
    P += pro_stamp
    return P, body
```

```python
import re

MFMA, VALU, TRANS, LDSR, LDSW, VMLD, VMST, DMA, SALU, WAIT, BAR, NOP, OTHER, SMEM, LABEL = \
    "mfma valu trans ldsr ldsw vmld vmst dma salu wait bar nop other smem label".split()

def R(p, lo, n=1):
    return f"{p}{lo}" if n == 1 else f"{p}[{lo}:{lo+n-1}]"
def regs(p, lo, n=1):
    return [f"{p}{lo+i}" for i in range(n)]

class Reg:
    def __init__(self, p, lo, n=1):
        self.p, self.lo, self.n = p, lo, n
    def __str__(self): return R(self.p, self.lo, self.n)
    def __getitem__(self, i):
        if isinstance(i, slice):
            a = i.start or 0; b = self.n if i.stop is None else i.stop
            assert 0 <= a < b <= self.n
            return Reg(self.p, self.lo + a, b - a)
        assert 0 <= i < self.n
        return Reg(self.p, self.lo + i, 1)
    def l(self): return regs(self.p, self.lo, self.n)
def V(lo, n=1): return Reg("v", lo, n)
def A(lo, n=1): return Reg("a", lo, n)
def S(lo, n=1): return Reg("s", lo, n)

def _l(x):
    out = []
    for e in x:
        if isinstance(e, Reg): out += e.l()
        elif isinstance(e, str): out.append(e)
        elif isinstance(e, (list, tuple)): out += _l(e)
    return out

class I:
    __slots__ = ("t", "k", "rd", "wr", "c", "cost", "tag", "vm", "lg", "dpp", "perm")
    def __init__(self, t, k, rd=(), wr=(), c=(), cost=None, tag=None, vm=None, lg=None, dpp=False, perm=False):
        self.t, self.k = t, k
        self.rd, self.wr, self.c = _l(rd), _l(wr), _l(c)
        self.tag = tag; self.vm = vm; self.lg = lg; self.dpp = dpp; self.perm = perm
        if cost is None:
            cost = {MFMA: 2, VALU: 1, TRANS: 2, LDSR: 1, LDSW: 6, VMLD: 2, VMST: 3, DMA: 1.5, SALU: 1, WAIT: 1, BAR: 1, NOP: 1, OTHER: 1, SMEM: 1, LABEL: 0}[k]
        self.cost = cost
    def __repr__(self): return self.t

def isreg(x): return isinstance(x, Reg)
def valu(op, d, *src, extra="", k=VALU, rd_d=False, dpp=False, perm=False, wr_extra=(), rd_extra=()):
    t = f"{op} {d}, " + ", ".join(str(s) for s in src) + (" " + extra if extra else "")
    rd = [s for s in src if isreg(s)] + ([d] if rd_d else []) + list(rd_extra)
    return I(t, k, rd=rd, wr=[d] + list(wr_extra), dpp=dpp, perm=perm)
def trans(op, d, s, extra=""): return valu(op, d, s, extra=extra, k=TRANS)
def salu(op, d, *src):
    t = f"{op} {d}, " + ", ".join(str(s) for s in src)
    return I(t, SALU, rd=[s for s in src if isreg(s) or s == "m0"], wr=[d])
def mfma32(d, a, b, c):
    return I(f"v_mfma_f32_32x32x16_bf16 {d}, {a}, {b}, {c}", MFMA, rd=[a, b], wr=[d], c=[c] if isreg(c) else [])
def ds_tr(d, addr, off):
    assert 0 <= off < 65536, off
    return I(f"ds_read_b64_tr_b16 {d}, {addr} offset:{off}", LDSR, rd=[addr], wr=[d])
def ds_rd(d, addr, off):
    assert 0 <= off < 65536, off
    op = {1: "ds_read_b32", 2: "ds_read_b64", 4: "ds_read_b128"}[d.n]
    return I(f"{op} {d}, {addr} offset:{off}", LDSR, rd=[addr], wr=[d])
def ds_wr(addr, s, off, op=None):
    assert 0 <= off < 65536, off
    op = op or {1: "ds_write_b32", 2: "ds_write_b64", 4: "ds_write_b128"}[s.n]
    return I(f"{op} {addr}, {s} offset:{off}", LDSW, rd=[addr, s], cost={1: 2, 2: 3, 4: 6}[s.n])
def buf_ld(d, voff, srd, soff, off=0, aux="", op=None):
    op = op or {1: "buffer_load_dword", 2: "buffer_load_dwordx2", 4: "buffer_load_dwordx4"}[d.n]
    assert 0 <= off < 4096
    return I(f"{op} {d}, {voff}, {srd}, {soff} offen" + (f" offset:{off}" if off else "") + (" " + aux if aux else ""), VMLD,
             rd=[voff, srd] + ([soff] if isreg(soff) else []), wr=[d])
def buf_st(s, voff, srd, soff, off=0, aux="", op=None):
    op = op or {1: "buffer_store_dword", 2: "buffer_store_dwordx2", 4: "buffer_store_dwordx4"}[s.n]
    assert 0 <= off < 4096
    return I(f"{op} {s}, {voff}, {srd}, {soff} offen" + (f" offset:{off}" if off else "") + (" " + aux if aux else ""), VMST,
             rd=[s, voff, srd] + ([soff] if isreg(soff) else []))
def dma(voff, srd, soff, off=0, tag=None):
    return I(f"buffer_load_dwordx4 {voff}, {srd}, {soff} offen" + (f" offset:{off}" if off else "") + " lds", DMA,
             rd=[voff, srd, "m0"] + ([soff] if isreg(soff) else []), tag=tag)
def wait(vm=None, lg=None):
    p = []
    if vm is not None: p.append(f"vmcnt({vm})")
    if lg is not None: p.append(f"lgkmcnt({lg})")
    return I("s_waitcnt " + " ".join(p), WAIT, vm=vm, lg=lg)
def wait_ops(vm_ops=(), lg_ops=(), regs_ready=()):
    i = I("s_waitcnt <sym>", WAIT)
    i.tag = ("sym", list(vm_ops), list(lg_ops), _l(regs_ready))
    return i
def bar(): return I("s_barrier", BAR)
def nop(n=0): return I(f"s_nop {n}", NOP, cost=n + 1)
def raw(t, k=OTHER, rd=(), wr=()): return I(t, k, rd=rd, wr=wr)
def label(n): return I(f"{n}:", LABEL)

VM_KINDS = (VMLD, VMST, DMA)
LG_KINDS = (LDSR, LDSW)

def finalize(prog, stats=None):
    out = []
    vmq, lgq = [], []
    smem_pending = set()
    ws = 0
    last = {}
    st = {"auto_wait": 0, "nops": 0, "dropped_wait": 0}
    def emit(i):
        nonlocal ws
        out.append(i)
        if i.k == NOP: ws += int(i.t.split()[1]) + 1
        elif i.k != LABEL: ws += 1
    def apply_wait(vm, lg):
        if vm is not None:
            del vmq[:max(0, len(vmq) - vm)]
        if lg is not None:
            del lgq[:max(0, len(lgq) - lg)]
            if lg == 0: smem_pending.clear()
    def need(q, rs):
        idx = -1
        for n, o in enumerate(q):
            if any(r in o.wr for r in rs): idx = n
        return None if idx < 0 else len(q) - 1 - idx
    def need_ops(q, ops):
        idx = -1
        ids = set(id(o) for o in ops)
        for n, o in enumerate(q):
            if id(o) in ids: idx = n
        return None if idx < 0 else len(q) - 1 - idx
    def mn(a, b):
        if a is None: return b
        if b is None: return a
        return min(a, b)
    for i in prog:
        if i.k == WAIT:
            if i.tag and i.tag[0] == "sym":
                vm = mn(need_ops(vmq, i.tag[1]), need(vmq, i.tag[3]))
                lg = mn(need_ops(lgq, i.tag[2]), need(lgq, i.tag[3]))
                if vm is None and lg is None:
                    st["dropped_wait"] += 1
                    continue
                if lg is not None and smem_pending: lg = 0
                if vm is not None: vm = min(vm, 63)
                if lg is not None: lg = min(lg, 15)
                w = wait(vm, lg); emit(w); apply_wait(vm, lg)
            else:
                emit(i); apply_wait(i.vm, i.lg)
            continue
        touched = i.rd + i.wr + i.c
        vm = need(vmq, touched); lg = need(lgq, touched)
        if any(r in smem_pending for r in touched): lg = 0
        if lg is not None and smem_pending: lg = 0
        if vm is not None or lg is not None:
            if vm is not None: vm = min(vm, 63)
            if lg is not None: lg = min(lg, 15)
            emit(wait(vm, lg)); apply_wait(vm, lg); st["auto_wait"] += 1
        if i.k in LG_KINDS and len(lgq) >= 15:
            emit(wait(None, 14)); apply_wait(None, 14); st["auto_wait"] += 1
        if i.k in VM_KINDS and len(vmq) >= 63:
            emit(wait(62, None)); apply_wait(62, None); st["auto_wait"] += 1
        req = 0
        def chk(cls, rs, n):
            nonlocal req
            for r in rs:
                p = last.get((cls, r))
                if p is not None:
                    have = ws - p - 1
                    if have < n: req = max(req, n - have)
        isv = i.k in (VALU, TRANS)
        mem = i.k in VM_KINDS or i.k in LG_KINDS
        if i.k == MFMA:
            chk("valu_w", i.rd + i.c, 2)
            chk("mfma_w", i.rd, 12)
            for r in i.c:
                p = last.get(("mfma_w", r))
                if p is not None and last.get(("mfma_rng", r)) != (i.c[0], len(i.c)):
                    have = ws - p - 1
                    if have < 10: req = max(req, 10 - have)
            if i.c != i.wr: chk("mfma_w", i.wr, 12)
            chk("exec_w", ["exec"], 4)
        if isv or mem:
            chk("mfma_w", i.rd + i.wr, 12)
        isdot = i.t.startswith("v_dot")
        if i.k == MFMA or mem or (isv and not isdot): chk("dot_w", i.rd + i.wr + i.c, 3)
        if isdot: chk("dot_w", i.rd[:-1], 3)
        if isv:
            chk("mfma_c", i.wr, 7)
            chk("st_data", i.wr, 2)
            chk("vsgpr_w", i.rd, 2)
            if i.k == VALU: chk("trans_w", i.rd, 1)
            else: chk("trans_w", i.rd, 1)
            if i.dpp or i.perm: chk("valu_w", i.rd, 2)
            if i.dpp: chk("exec_w", ["exec"], 5)
            if i.t.startswith("v_readfirstlane") or i.t.startswith("v_readlane"): chk("valu_w", i.rd, 1)
        if mem:
            chk("mfma_c", i.wr, 7)
            chk("st_data", i.wr, 1)
            chk("trans_w", i.rd, 1)
        if i.k in VM_KINDS:
            chk("vsgpr_w", i.rd, 5)
        if i.k == DMA: chk("m0_w", ["m0"], 1)
        if i.k in (SALU, OTHER, SMEM): chk("vsgpr_w", i.rd, 4)
        while req > 0:
            n = min(req, 16); emit(nop(n - 1)); st["nops"] += n; req -= n
        here = ws
        emit(i)
        if i.k == MFMA:
            for r in i.wr:
                last[("mfma_w", r)] = here; last[("mfma_rng", r)] = (i.wr[0], len(i.wr))
            for r in i.c: last[("mfma_c", r)] = here
        if isv:
            for r in i.wr:
                if r[0] in "va" and r != "vcc": last[("valu_w", r)] = here
                else: last[("vsgpr_w", r)] = here
                if r == "exec": last[("exec_w", r)] = here
                if isdot: last[("dot_w", r)] = here
                if i.k == TRANS: last[("trans_w", r)] = here
                else: last.pop(("trans_w", r), None)
                last.pop(("mfma_w", r), None)
        if i.k == SALU and "m0" in i.wr: last[("m0_w", "m0")] = here
        if i.k == VMST and len(i.rd) >= 3:
            for r in i.rd:
                if r[0] in "va": last[("st_data", r)] = here
        if i.k in VM_KINDS: vmq.append(i)
        if i.k in LG_KINDS: lgq.append(i)
        if i.k == SMEM: smem_pending.update(i.wr)
    if stats is not None: stats.update(st)
    return out

def estimate(prog):
    cyc = 0.0; gap = None; prev = None; tot_m = 0
    def close():
        nonlocal cyc, gap
        if gap is not None: cyc += max(32.0, gap)
        gap = None
    free = False
    for i in prog:
        if i.k == LABEL: continue
        if i.k == MFMA:
            close(); gap = 8.0; free = True; tot_m += 1; prev = i; continue
        c = i.cost * 4.0
        if i.k in (SALU, WAIT, BAR) and free: c = 0.0
        if (i.k in LG_KINDS or i.k in VM_KINDS) and prev is not None and prev.k in (VALU, TRANS): c += 8.0
        free = False
        if gap is None: cyc += c
        else: gap += c
        prev = i
    close()
    return cyc, tot_m

def text(prog):
    return "\n".join(("" if i.k == LABEL else "  ") + i.t for i in prog)
```

```python
from common import *
import math
def build_k2():
    p = []; a = p.append
    SX, SO, SW, SB = S(4, 4), S(8, 4), S(12, 4), S(16, 4)
    a(raw("s_cmp_ge_u32 s2, 256", SALU)); a(raw("s_cbranch_scc1 L_end2"))
    if Stamps.on: a(I("s_memrealtime s[40:41]", SMEM, wr=[S(40, 2)]))
    a(I("s_load_dwordx2 s[20:21], s[0:1], 0", SMEM, wr=[S(20, 2)]))
    a(I("s_load_dwordx4 s[24:27], s[0:1], 56", SMEM, wr=[S(24, 4)]))
    a(I("s_load_dwordx2 s[22:23], s[0:1], 80", SMEM, wr=[S(22, 2)]))
    a(valu("v_readfirstlane_b32", S(28), V(0)))
    a(valu("v_and_b32", V(1), 63, V(0)))
    a(salu("s_lshr_b32", S(28), S(28), 6))
    a(salu("s_mul_i32", S(29), S(2), 9)); a(salu("s_add_u32", S(29), S(29), S(28)))
    a(salu("s_lshl_b32", S(30), S(29), 10))
    a(valu("v_lshlrev_b32", V(2), 4, V(1)))
    a(salu("s_mul_i32", S(31), S(29), 1821)); a(salu("s_lshr_b32", S(31), S(31), 16))
    a(salu("s_mul_i32", S(32), S(31), 36)); a(salu("s_sub_u32", S(32), S(29), S(32)))
    a(salu("s_mul_i32", S(33), S(31), 32 * 1152)); a(salu("s_lshl_b32", S(34), S(32), 5)); a(salu("s_add_u32", S(33), S(33), S(34)))
    a(valu("v_and_b32", V(3), 31, V(1))); a(valu("v_mul_u32_u24", V(3), 1152, V(3)))
    a(valu("v_lshrrev_b32", V(4), 5, V(1)))
    a(valu("v_lshl_add_u32", V(5), V(4), 3, V(3)))
    a(valu("v_lshl_add_u32", V(6), V(4), 4, V(3)))
    a(valu("v_lshlrev_b32", V(7), 3, V(4)))
    a(wait(lg=0))
    p += srd(SW, S(22, 2), 64 << 20) + srd(SX, S(20, 2), SLAB) + srd(SB, S(24, 2), 1152) + srd(SO, S(26, 2), SLAB)
    L = [V(32 + 4 * i, 4) for i in range(16)]
    for i in range(16):
        a(buf_ld(L[i], V(2), SW, S(30)))
        if i < 15: a(salu("s_add_u32", S(30), S(30), hex(SLAB)))
    X = V(8, 4); B = V(12, 4)
    a(buf_ld(X[0:2], V(5), SX, S(33))); a(buf_ld(X[2:4], V(5), SX, S(33), off=16))
    a(buf_ld(B[0:2], V(7), SB, S(34))); a(buf_ld(B[2:4], V(7), SB, S(34), off=16))
    a(salu("s_mov_b32", S(35), "0xffff0000"))
    Y = V(16, 8); Sx = V(24, 8)
    def acc(dst, src, first):
        for j in range(4):
            if first:
                a(valu("v_lshlrev_b32", dst[2 * j], 16, src[j])); a(valu("v_and_b32", dst[2 * j + 1], S(35), src[j]))
            else:
                a(valu("v_lshlrev_b32", V(3), 16, src[j])); a(valu("v_and_b32", src[j], S(35), src[j]))
                a(valu("v_add_f32", dst[2 * j], dst[2 * j], V(3))); a(valu("v_add_f32", dst[2 * j + 1], dst[2 * j + 1], src[j]))
    for i in range(12): acc(Y, L[i], i == 0)
    for i in range(12, 16): acc(Sx, L[i], i == 12)
    acc(Y, B, False)
    T = V(32, 8)
    for j in range(8): a(valu("v_mul_f32", T[j], f32(-math.log2(math.e)), Y[j]))
    for j in range(8): a(trans("v_exp_f32", T[j], T[j]))
    for j in range(8): a(valu("v_add_f32", T[j], "1.0", T[j]))
    for j in range(8): a(trans("v_rcp_f32", T[j], T[j]))
    for j in range(8): a(valu("v_mul_f32", Y[j], Y[j], T[j]))
    for j in range(4):
        a(valu("v_lshlrev_b32", T[2 * j], 16, X[j])); a(valu("v_and_b32", T[2 * j + 1], S(35), X[j]))
    for j in range(8): a(valu("v_fma_f32", Y[j], Y[j], Sx[j], T[j]))
    O = V(40, 4)
    for j in range(4): a(valu("v_cvt_pk_bf16_f32", O[j], Y[2 * j], Y[2 * j + 1]))
    for j in range(2):
        a(I(f"v_permlane32_swap_b32 {O[j]}, {O[j+2]}", VALU, rd=[O[j], O[j + 2]], wr=[O[j], O[j + 2]], perm=True))
    a(buf_st(O, V(6), SO, S(33)))
    if Stamps.on:
        a(wait(vm=0)); a(I("s_memrealtime s[42:43]", SMEM, wr=[S(42, 2)])); a(wait(lg=0))
        a(valu("v_mov_b32", V(8), S(40))); a(valu("v_mov_b32", V(9), S(42))); a(valu("v_mov_b32", V(3), 0))
        a(salu("s_lshl_b32", S(29), S(29), 3)); a(salu("s_add_u32", S(29), S(29), hex(49 << 20)))
        a(raw("s_mov_b64 exec, 1", SALU))
        a(buf_st(V(8, 2), V(3), SW, S(29)))
    return p
```

```python
from fw import *

PRE, MEM, VAL = 0, 1, 2

class Item:
    __slots__ = ("make", "cls", "cost", "earliest", "deadline", "cond", "gap", "ins", "pub", "name", "on_emit", "lat")
    def __init__(self, make, cls, cost, earliest=-1, deadline=10**9, cond=None, name="", on_emit=None):
        self.make, self.cls, self.cost = make, cls, cost
        self.earliest, self.deadline, self.cond = earliest, deadline, cond
        self.gap = None; self.ins = None; self.pub = None; self.name = name; self.on_emit = on_emit
def item(ins, **kw):
    cls = PRE if ins.k in (SALU, WAIT, BAR) else (MEM if ins.k in LG_KINDS + VM_KINDS else VAL)
    return Item(lambda: [ins], cls, ins.cost, **kw)

class Stream:
    def __init__(self, name, items, pace=0, prio=False):
        self.prio = prio
        self.name, self.items, self.pos = name, items, 0
        self.last_gap, self.last_cls = None, None
        self.pace = pace
        self.last_mem_gap = -10**9
        d = 10**9
        for it in reversed(items):
            d = min(d, it.deadline); it.deadline = d
    def head(self): return self.items[self.pos] if self.pos < len(self.items) else None

class Sched:
    def __init__(self, mfmas, bar_every=8, cap=6.0):
        self.M = mfmas; self.n = len(mfmas); self.cap = cap
        self.streams = []
        self.fixed = {}
        self.bars = set(range(bar_every - 1, self.n, bar_every))
        self.to_publish = []
        self.dma_need = []
        self.on_bar = []
        self.gap = -1
        self.out = []
        self.overflow = 0.0
    def add(self, s): self.streams.append(s); return s
    def fix(self, gap, it): self.fixed.setdefault(max(gap, -1), []).append(it)
    def next_bar(self, g):
        c = [b for b in self.bars if b > g]
        return min(c) if c else 10**9
    def ready(self, s, it, g, force=False):
        if it.earliest > g: return False
        if it.cond is not None and not it.cond(g): return False
        if s.last_gap == g and it.cls < s.last_cls: return False
        if not force and it.cls == MEM and g - s.last_mem_gap < s.pace: return False
        return True
    def emit(self, it, g, slots, s=None):
        it.ins = it.make(); it.gap = g
        slots[it.cls] += it.ins
        if s is not None:
            s.pos += 1; s.last_gap = g; s.last_cls = it.cls
            if it.cls == MEM: s.last_mem_gap = g
        if it.on_emit: it.on_emit(it, g)
    def barrier_ops(self, g, force_all=False):
        nb = self.next_bar(g)
        vm_ops = []
        rest = []
        for fr, it in self.dma_need:
            if fr < nb:
                assert it.gap is not None, f"DMA {it.name} needed at gap {fr} not issued by barrier at {g}"
                vm_ops += it.ins; it.pub = g
            else: rest.append((fr, it))
        self.dma_need = rest
        lg_ops = []; keep = []
        for it in self.to_publish:
            if it.gap is not None and (force_all or it.gap <= g - 2):
                lg_ops += it.ins; it.pub = g
            else: keep.append(it)
        self.to_publish = keep
        return [wait_ops(vm_ops=vm_ops, lg_ops=lg_ops), bar()]
    def run_gap(self, g, cap):
        slots = [[], [], []]
        used = 0.0
        free_pre = True
        if g in self.bars:
            slots[PRE] += self.barrier_ops(g); used += 1; free_pre = False
            for cb in self.on_bar: cb(g)
        if g + 1 < self.n:
            m = self.M[g + 1]
            slots[PRE].append(wait_ops(regs_ready=m.rd + m.c))
            if getattr(m, "tag", None) == "newA":
                if not free_pre: used += 1
                free_pre = False
        for it in self.fixed.pop(g, []):
            self.emit(it, g, slots); used += it.cost
        while True:
            best = None
            for s in self.streams:
                it = s.head()
                if it is None: continue
                must = it.deadline <= g
                if not self.ready(s, it, g, force=must): continue
                c = 0.0 if (it.cls == PRE and free_pre) else it.cost
                if s.prio and not (it.cls == PRE and not free_pre and not must):
                    best = (s, it, c); break
                if not must and used + c > cap + (0.51 if c <= 2 else c - 2.0 if used <= 2 else 0): continue
                if best is None or it.deadline < best[1].deadline: best = (s, it, c)
            if best is None: break
            s, it, c = best
            if it.cls == PRE: free_pre = False
            self.emit(it, g, slots, s); used += c
        if used > cap: self.overflow += used - cap
        return slots[PRE] + slots[MEM] + slots[VAL]
    def run(self):
        out = []
        for g in range(0, self.n):
            self.gap = g
            out.append(self.M[g])
            out += self.run_gap(g, self.cap)
        g = self.n
        guard = 0
        while any(s.head() is not None for s in self.streams):
            self.gap = g
            o = self.run_gap(g, 1000.0)
            out += o
            g += 1; guard += 1
            assert guard < 200, [ (s.name, s.head().name) for s in self.streams if s.head() is not None]
        late = [(s.name, it.name, it.gap, it.deadline) for s in self.streams for it in s.items if it.gap > it.deadline]
        self.late = late
        return out

class LDSAlloc:
    def __init__(self, units):
        self.free = list(units)
    def avail(self): return len(self.free) > 0
    def get(self): return self.free.pop(0)
    def put(self, u): self.free.append(u)
```

```python
import sys
sys.path.insert(0, "gen")
from common import *
import ffn

KNAME = "recurrent_scan__linear_attn_block__dense_activation_gelu__prompt_kernel"

def k1_entry():
    p = []; a = p.append
    a(raw("s_cmp_ge_u32 s2, 256", SALU)); a(raw("s_cbranch_scc1 L_end"))
    a(I("s_load_dwordx16 s[64:79], s[0:1], 0", SMEM, wr=[sP]))
    a(I("s_load_dwordx4 s[80:83], s[0:1], 72", SMEM, wr=[sP2]))
    p += stamp() + rstamp(10)
    a(valu("v_readfirstlane_b32", sW, V(0)))
    a(salu("s_and_b32", sT[0], sWG, 7))
    a(salu("s_lshr_b32", sT[1], sWG, 3))
    a(salu("s_and_b32", sJ8, sT[1], 7))
    a(salu("s_and_b32", sRB, sT[0], 1)); a(salu("s_lshl_b32", sRB, sRB, 3)); a(salu("s_add_u32", sRB, sRB, sJ8))
    a(salu("s_lshr_b32", sROLE, sT[1], 3))
    a(salu("s_lshr_b32", sXH, sT[0], 1))
    a(salu("s_lshr_b32", sW, sW, 6))
    a(salu("s_lshr_b32", sR2, sW, 1)); a(salu("s_and_b32", sC2, sW, 1))
    p += entry_lane_setup()
    a(raw(f"s_cmp_eq_u32 {sROLE}, 0", SALU, rd=[sROLE])); a(raw("s_cbranch_scc1 L_attn"))
    return p

def ffn_entry():
    return ffn.ffn_pre() + [wait(lg=0)]

def kd(name, v, acc, sg=102):
    return f""".p2align 6
.amdhsa_kernel {name}
  .amdhsa_next_free_vgpr {v}
  .amdhsa_next_free_sgpr {sg}
  .amdhsa_accum_offset {acc}
  .amdhsa_group_segment_fixed_size 0
  .amdhsa_kernarg_size 88
  .amdhsa_user_sgpr_count 2
  .amdhsa_user_sgpr_kernarg_segment_ptr 1
  .amdhsa_system_sgpr_workgroup_id_x 1
.end_amdhsa_kernel"""

def build(path, **kw):
    import k2, attn
    st = {}
    Stamps.on = kw.get("stamps", False); Stamps.n = 0
    head = k1_entry()
    P, body = ffn.build_ffn(**kw.get("ffn", {}))
    drop = kw.get("drop", ())
    if drop: body = [i for i in body if i.k not in drop]
    body = body + stamp_dump()
    f = finalize(head + ffn_entry() + P + body, st)
    print("ffn finalize:", st, "est total", estimate(f), "est body", estimate(finalize(body)), "ninstr", len(f))
    st2 = {}
    ap = attn.build_attn(**kw.get("attn", {}))
    af = finalize(head + ap, st2)[len(finalize(head)):]
    print("attn finalize:", st2, "est", estimate(af), "ninstr", len(af))
    k2p = finalize(k2.build_k2())
    hdr = open("recurrent_scan__linear_attn_block__dense_activation_gelu__prompt.s.ref").read().split("; Override launch")[0]
    out = [hdr.rstrip(),
           f"; @launch kernel={KNAME} grid=(256,1,1) block=(256,1,1) lds=163840",
           f"; @launch kernel=fin_kernel grid=(256,1,1) block=(576,1,1) lds=0",
           '.amdgcn_target "amdgcn-amd-amdhsa--gfx950"', ".text",
           f".globl {KNAME}", ".p2align 8", f".type {KNAME},@function", f"{KNAME}:",
           text(f), "L_end:", "  s_endpgm", ".p2align 6", "L_attn:", text(af), "  s_endpgm",
           ".globl fin_kernel", ".p2align 8", ".type fin_kernel,@function", "fin_kernel:", text(k2p), "L_end2:", "  s_endpgm",
           '.section .rodata,"a"', kd(KNAME, 512, 256), kd("fin_kernel", 96, 96, 48)]
    open(path, "w").write("\n".join(out) + "\n")

if __name__ == "__main__":
    if len(sys.argv) > 2 and sys.argv[2] == "r": Stamps.op = "s_memrealtime"
    build(sys.argv[1] if len(sys.argv) > 1 else "recurrent_scan__linear_attn_block__dense_activation_gelu__prompt.s", stamps=len(sys.argv) > 2)
```

```python
from common import *

LOG2E = math.log2(math.e)
OOFF = 32 << 20
WOFF = 36 << 20
GOFF = 40 << 20
OOB = "0x7ff00000"
vQ1 = [V(2), V(3)]; vQ4 = [V(4), V(5)]
vQ5 = [V(6), V(7)]
vDQ = [V(16), V(17), V(18)]; vDS = [V(19), V(15)]
aXW = [V(240), V(241), V(242), V(243)]
def axf(T, i):
    s = (T >> 2) & 1; k = 2 * (T & 3) + i
    return A(224 + 4 * k, 4) if s == 0 else V(208 + 4 * k, 4)
def ACCa(tile, i): return A(32 * tile + 16 * i, 16)
TOFF = {0: 0, 1: 288, 2: 72, 3: 288 + 72}
PITCH = 704
SLOT = 12288

def poll(name, off, target):
    v = vX0; s = sT[0]; c = sT[1]
    return [wait(lg=0), valu("v_mov_b32", vX1, 0), salu("s_mov_b32", c, 0),
            raw(f"s_cmp_lg_u32 {sW}, 0", SALU, rd=[sW]), raw(f"s_cbranch_scc1 {name}_x"), label(name),
            I(f"buffer_load_dword {v}, {vX1}, {SRD_DBG}, {sE[0]} offen offset:{off} sc1", OTHER, rd=[vX1]),
            salu("s_add_u32", c, c, 1), raw(f"s_cmp_ge_u32 {c}, 0x200000", SALU, rd=[c]), raw("s_waitcnt vmcnt(0)"),
            raw(f"s_cbranch_scc1 {name}_x"),
            valu("v_readfirstlane_b32", s, v), nop(3),
            raw(f"s_cmp_ge_u32 {s}, {target}", SALU, rd=[s]), raw(f"s_cbranch_scc1 {name}_x"),
            raw("s_sleep 4"), raw(f"s_branch {name}"), label(name + "_x")]
def check_or_poll(name, v, vz, off, target):
    s = sT[0]; c = sT[1]
    return [salu("s_mov_b32", c, 0), label(name), valu("v_readfirstlane_b32", s, v), nop(3),
            raw(f"s_cmp_ge_u32 {s}, {target}", SALU, rd=[s]), raw(f"s_cbranch_scc1 {name}_x"),
            raw("s_sleep 8"),
            I(f"buffer_load_dword {v}, {vz}, {SRD_DBG}, {sE[0]} offen offset:{off} sc1", OTHER, rd=[vz]),
            salu("s_add_u32", c, c, 1), raw(f"s_cmp_ge_u32 {c}, 0x200000", SALU, rd=[c]), raw("s_waitcnt vmcnt(0)"),
            raw(f"s_cbranch_scc0 {name}"), label(name + "_x")]
def signal(off, va, vb):
    return [valu("v_lshlrev_b32", va, 12, vTID), valu("v_mov_b32", vb, 1),
            I(f"buffer_atomic_add {vb}, {va}, {SRD_DBG}, {sE[0]} offen offset:{off}", VMST, rd=[vb, va, SRD_DBG, sE[0]])]

def fin(dst, x0, x1):
    if dst.p == "v": return [valu("v_cvt_pk_bf16_f32", dst, x0, x1)]
    return [valu("v_cvt_pk_bf16_f32", x0, x0, x1), valu("v_accvgpr_write_b32", dst, x0)]
def phi_pair(dst, a0, a1, t):
    x0, x1, e0, e1 = t[0], t[1], t[2], t[3]
    return [valu("v_accvgpr_read_b32", x0, a0), valu("v_accvgpr_read_b32", x1, a1),
            valu("v_mul_f32", e0, f32(LOG2E), x0), valu("v_mul_f32", e1, f32(LOG2E), x1),
            trans("v_exp_f32_e64", e0, e0, extra="clamp"), trans("v_exp_f32_e64", e1, e1, extra="clamp"),
            valu("v_max_f32", x0, 0, x0), valu("v_max_f32", x1, 0, x1),
            valu("v_add_f32", x0, x0, e0), valu("v_add_f32", x1, x1, e1),
            valu("v_add_f32", x0, f32(1e-6), x0), valu("v_add_f32", x1, f32(1e-6), x1)] + fin(dst, x0, x1)
def cvt_pair(dst, a0, a1, t):
    return [valu("v_accvgpr_read_b32", t[0], a0), valu("v_accvgpr_read_b32", t[1], a1)] + fin(dst, t[0], t[1])

def build_attn(D=6, BAR=20, BARB=8, dma_pace=2, NPER=8, U3=2, n0=12, ypace=3, BAR2=18, rotK=True, maxdma=5, dma_from=36,
               X1=32, X2=6, pfw=120, pause=30, sigdelay=40, tlb=True, ctouch=True, verbose=True):
    sHG = sXH
    sM3 = sE[1]
    B = Builder(D, dma_pace, xf=axf, nblk=4, m0b=sM3); B.rounds = 2; B.xw = aXW
    sXO = [S(3), S(20), S(21), S(22), S(23), S(60), S(61), S(62), S(63)]; sKO = [S(70 + i) for i in range(9)]
    P = rot_table(sXO, sJ8 if rotK else 0, 9, 128, sXB, sT[1]) + [wait(lg=0)]
    P += srd(SRD_X, sP[0:2], SLAB)
    post = code_touch() if ctouch else []; a = post.append
    post += [salu("s_mov_b32", sONE, "0x3f803f80"), salu("s_mov_b32", sMASK, "0xffff0000")]
    post += srd(SRD_W1, sP[2:4], 1990656) + srd(SRD_W2, sP[4:6], 663552) + srd(SRD_WS, sP2[2:4], 64 << 20) + srd(SRD_DBG, sP2[0:2], 256)
    a(salu("s_lshl_b32", sE[0], sHG, 4))
    a(salu("s_mul_i32", sE[2], sHG, 98304)); a(salu("s_add_u32", sE[2], sE[2], hex(GOFF)))
    Z = V(248, 4)
    for j in range(4): a(valu("v_mov_b32", Z[j], 0))
    a(valu("v_mov_b32", vT[5], OOB))
    a(valu("v_lshrrev_b32", vX2, 5, vLANE))
    post += lane_setup(aXW)[16:]
    a(salu("s_mul_i32", sM3, sW, 3072))
    for p_ in range(3):
        a(valu("v_add_u32", vX0, 64 * p_, vLANE))
        a(valu("v_mul_u32_u24", vX1, 1490, vX0)); a(valu("v_lshrrev_b32", vX1, 16, vX1))
        a(valu("v_mul_u32_u24", vX2, 44, vX1)); a(valu("v_sub_u32", vX2, vX0, vX2))
        a(valu("v_mul_u32_u24", vX3, 57, vX2)); a(valu("v_lshrrev_b32", vX3, 10, vX3))
        a(valu("v_mul_u32_u24", vT[0], 1152 - 288, vX3))
        a(valu("v_lshl_add_u32", vT[0], vX2, 4, vT[0])); a(valu("v_add_u32", vT[0], 1152, vT[0]))
        a(valu("v_mul_u32_u24", vT[2], 144, vX2)); a(valu("v_subrev_u32", vT[2], 36 * 144 - 128, vT[2]))
        a(I(f"v_cmp_gt_u32 vcc, 36, {vX2}", VALU, rd=[vX2], wr=["vcc"]))
        a(valu("v_cndmask_b32", vT[0], vT[2], vT[0], "vcc", rd_extra=["vcc"]))
        a(valu("v_mul_u32_u24", vT[1], 3456, vX1))
        a(salu("s_mul_i32", sT[0], sW, 4 * 3456)); a(salu("s_add_u32", sT[0], sT[0], hex(4096 - 1024 * p_)))
        a(valu("v_add3_u32", vT[0], vT[0], vT[1], sT[0]))
        a(I(f"v_cmp_gt_u32 vcc, 38, {vX2}", VALU, rd=[vX2], wr=["vcc"]))
        a(valu("v_cndmask_b32", vT[0], vT[5], vT[0], "vcc", rd_extra=["vcc"]))
        a(I(f"v_cmp_gt_u32 vcc, 4, {vX1}", VALU, rd=[vX1], wr=["vcc"]))
        a(valu("v_cndmask_b32", vDQ[p_], vT[5], vT[0], "vcc", rd_extra=["vcc"]))
    l = vLANE
    a(valu("v_lshrrev_b32", vX0, 4, l)); a(valu("v_bfe_u32", vX1, l, 2, 2)); a(valu("v_xor_b32", vX1, vX1, vX0))
    a(valu("v_lshrrev_b32", vX2, 1, vX1)); a(valu("v_mul_u32_u24", vX2, 144, vX2))
    a(valu("v_and_b32", vX1, 1, vX1)); a(valu("v_lshl_add_u32", vX2, vX1, 6, vX2))
    a(valu("v_and_b32", vX1, 3, l)); a(valu("v_lshl_add_u32", vX2, vX1, 4, vX2))
    a(valu("v_mul_u32_u24", vX0, 3456, vX0))
    a(salu("s_mul_i32", sT[0], sW, 8 * 3456)); a(salu("s_add_u32", sT[0], sT[0], 4096))
    a(valu("v_add3_u32", vDS[0], vX0, vX2, sT[0])); a(valu("v_add_u32", vDS[1], 4 * 3456 - 1024, vDS[0]))
    a(salu("s_sub_u32", SRD_W1[0], SRD_W1[0], 4096)); a(raw(f"s_subb_u32 {SRD_W1[1]}, {SRD_W1[1]}, 0", SALU, rd=[SRD_W1[1]], wr=[SRD_W1[1]]))
    a(salu("s_mov_b32", SRD_W1[2], hex(1990656 + 4096)))
    a(salu("s_mul_i32", sB1, sHG, 288))
    post += rot_table(sKO, sJ8 if rotK else 0, 9, 64 * 3456, sB1, sT[1])
    a(valu("v_bfe_u32", vT[3], l, 2, 2)); a(valu("v_mul_u32_u24", vX0, PITCH, vT[3]))
    a(valu("v_lshrrev_b32", vT[4], 5, l)); a(valu("v_mul_u32_u24", vX1, 6144, vT[4])); a(valu("v_add_u32", vX0, vX0, vX1))
    a(valu("v_and_b32", vX1, 3, l)); a(valu("v_bfe_u32", vX2, l, 4, 1))
    a(valu("v_lshl_add_u32", vX3, vX2, 2, vX1))
    a(salu("s_mul_i32", sT[0], sC2, 144))
    a(valu("v_lshl_add_u32", vQ1[0], vX3, 3, vX0)); a(valu("v_add_u32", vQ1[0], sT[0], vQ1[0]))
    a(valu("v_and_b32", vT[0], 1, l)); a(valu("v_bfe_u32", vT[1], l, 1, 1))
    a(valu("v_mul_u32_u24", vT[2], 288, vT[0])); a(valu("v_mul_u32_u24", vT[1], 72, vT[1]))
    a(salu("s_add_u32", sT[0], sT[0], 64)); a(valu("v_add3_u32", vT[2], vT[2], vT[1], sT[0]))
    a(salu("s_lshl_b32", sT[0], sC2, 4)); a(salu("s_add_u32", sT[0], sT[0], 576))
    a(valu("v_lshl_add_u32", vT[0], vT[0], 3, sT[0]))
    a(I(f"v_cmp_eq_u32 s[58:59], 1, {vX2}", VALU, rd=[vX2], wr=[S(58, 2)]))
    a(valu("v_cndmask_b32", vT[2], vT[2], vT[0], S(58, 2)))
    a(valu("v_add_u32", vQ4[0], vX0, vT[2]))
    a(valu("v_add_u32", vQ1[1], hex(65536), vQ1[0])); a(valu("v_add_u32", vQ4[1], hex(65536), vQ4[0]))
    a(valu("v_lshl_add_u32", vX0, vT[4], 3, vT[3])); a(valu("v_lshlrev_b32", vX0, 8, vX0)); a(valu("v_lshl_add_u32", vX0, vX3, 3, vX0))
    a(salu("s_lshl_b32", sT[0], sC2, 1)); a(valu("v_xor_b32", vX1, sT[0], vT[3]))
    a(valu("v_lshl_add_u32", vQ5[0], vX1, 6, vX0)); a(valu("v_add_u32", vQ5[0], hex(4 * SLOT), vQ5[0])); a(valu("v_xor_b32", vQ5[1], 64, vQ5[0]))
    a(salu("s_add_u32", sSTB, sHG, 12)); a(salu("s_mul_i32", sSTB, sSTB, SLAB)); a(salu("s_add_u32", sSTB, sSTB, sXB))
    a(salu("s_mul_i32", sB2, sHG, 144 * 1152))
    a(valu("v_mov_b32", vPF[1], 0))
    if tlb:
        a(raw(f"s_cmp_ge_u32 {sRB}, 9", SALU, rd=[sRB])); a(salu("s_cselect_b32", sT[0], 9, 0)); a(salu("s_sub_u32", sT[0], sRB, sT[0]))
        a(salu("s_lshl_b32", sT[0], sT[0], 7)); a(salu("s_add_u32", sT[0], sT[0], sB2))
        a(valu("v_min_u32", vX0, 35, vLANE)); a(salu("s_mul_i32", sT[1], sW, 36)); a(valu("v_add_u32", vX0, sT[1], vX0)); a(valu("v_mul_u32_u24", vPF[0], 1152, vX0))
        a(salu("s_mov_b32", S(79), sT[0]))
        a(valu("v_min_u32", vX0, 1, vTID)); a(valu("v_mul_u32_u24", vX1, 147456 - 4, vX0))
        a(salu("s_add_u32", sT[0], sXB, hex(OOFF))); a(touch(vX1, SRD_WS, sT[0]))
        a(salu("s_mov_b32", sT[1], hex(WOFF))); a(touch(vPF[1], SRD_WS, sT[1]))
        a(salu("s_mov_b32", sT[1], hex(GOFF + (1 << 20)))); a(touch(vPF[1], SRD_WS, sT[1]))
        a(touch(vPF[1], SRD_DBG, 0))

    M = B.M; B.xlast = {}
    for t in range(36):
        u = B.unit(("wkv", t), vDQ, SRD_W1, sKO[t >> 2], (t & 3) * 16 * 3456)
        B.xuse[t] = len(M)
        for tile in (4, 0, 1, 2, 3):
            def mk(av, h, u=u, tile=tile):
                ad = u.addr + h * 3072 + (TOFF[tile] if tile != 4 else 0)
                return ds_tr(av[2 * h:2 * h + 2], (vQ1 if tile != 4 else vQ4)[ad >> 16], ad & 0xffff)
            av = B.next_a(u, mk)
            for i in range(2):
                acc = ACCa(tile, i)
                B.add(mfma32(acc, axf(t, i), av, acc if t else 0), i == 0, u)
        B.xlast[t] = len(M) - 1
    S2 = len(M)
    PK = {"4A": A(128, 16), "4B": V(64, 16), 0: A(0, 16), 1: A(32, 16), 2: A(64, 16), 3: A(96, 16)}
    PD = {"01": A(16, 16), "04": A(48, 16), "41": A(144, 16), "44": V(80, 16), "23": A(80, 16), "24": A(112, 16), "43": V(96, 16)}
    def prod(name, ta, tb):
        return [mfma32(PD[name], PK[ta][4 * k:4 * k + 4], PK[tb][4 * k:4 * k + 4], PD[name] if k else 0) for k in range(4)]
    m1 = prod("01", 0, 1) + prod("04", 0, "4B") + prod("41", "4A", 1) + prod("44", "4A", "4B")
    m2 = prod("23", 2, 3) + prod("24", 2, "4B") + prod("43", "4A", 3)
    pos = {}
    cnt = 0
    for t in range(36):
        if cnt == X1:
            pos["m1"] = len(M)
            for m in m1: B.add(m)
        if cnt == X1 + X2 - (X2 % 4):
            pos["m2"] = len(M)
            for m in m2: B.add(m)
            pos["m2e"] = len(M) - 1
        u = B.unit(("wq", t >> 1), vDS, SRD_W1, sKO[t >> 2], ((t >> 1) & 1) * 32 * 3456, sM0B)
        B.xuse[36 + t] = len(M)
        for tile in (5, 6):
            def mk(av, h, u=u, tile=tile, t=t):
                assert u.addr >= 4 * SLOT
                return ds_tr(av[2 * h:2 * h + 2], vQ5[tile - 5], u.addr - 4 * SLOT + (t & 1) * 4096 + h * 1024)
            av = B.next_a(u, mk)
            for i in range(2):
                acc = ACCa(tile, i)
                B.add(mfma32(acc, axf(36 + t, i), av, acc if t else 0), i == 0, u); cnt += 1
        B.xlast[36 + t] = len(M) - 1
    bars = list(range(5, S2 - 12, BAR)) + list(range(S2 - 5, len(M), BARB))
    sc = B.make_sched(bars, [SLOT * k for k in range(8)])
    sb = sorted(bars)
    n1u = 36
    def retire(addr, g): return addr < 4 * SLOT and all(u.addr is not None for u in B.units[:n1u])
    B.retire = retire
    for its, u in zip(B.allu[n1u:], B.units[n1u:]):
        def cond(g):
            for x in [x for x in B.ring.free if x < 4 * SLOT]:
                B.ring.free.remove(x); B.retired[x] = g
            return B.ring.avail()
        its[1].cond = cond
    P += B.ln_prologue(post, NPER, U3, tmp=V(208, 32), maxdma=maxdma, n0=n0, xso=sXO, dma_from=dma_from)
    P += B.first_barrier()
    B.ln_streams(P)
    pub = lambda it, g: sc.to_publish.append(it)
    sc.fix(pfw, item(touch(vPF[0], SRD_W2, S(79)))); B.blackout = [(pfw, pfw + pause)]
    tmp = [V(34), V(35), V(38), V(39)]; tmp2 = [V(40), V(41), V(42), V(8)]
    def ep_tile(name, tile, fn):
        o = []
        for i in range(2):
            for j in range(0, 8, 2):
                x = fn(PK[name][8 * i + j], ACCa(tile, i)[2 * j], ACCa(tile, i)[2 * j + 1], tmp)
                y = fn(PK[name][8 * i + j + 1], ACCa(tile, i)[2 * j + 2], ACCa(tile, i)[2 * j + 3], tmp2)
                for p_, q_ in zip(x, y): o += [p_, q_]
        return o
    e1 = [valu("v_mov_b32", vX3, "0x3f803f80")] + ep_tile("4B", 4, cvt_pair)
    e1 += [valu("v_cndmask_b32", PK["4B"][j], PK["4B"][j], vX3, S(58, 2)) for j in range(16)]
    e1 += ep_tile("4A", 4, phi_pair) + ep_tile(0, 0, phi_pair) + ep_tile(1, 1, cvt_pair)
    e2 = ep_tile(2, 2, phi_pair) + ep_tile(3, 3, cvt_pair)
    def spread(ins, g0, g1, name, cond=None):
        tot = sum(i.cost for i in ins); c = 0; out = []
        for i in ins:
            c += i.cost
            out.append(item(i, earliest=g0, deadline=g0 + int((g1 - g0) * c / tot), name=name))
        if cond: out[0].cond = cond
        return out
    emitted = lambda its: (lambda g: all(x.gap is not None and x.gap < g for x in its))
    raw_free = lambda n: [w for U in range(9, 9 + n) for w in B.xw_items[U]]
    for w in raw_free(4): w.deadline = min(w.deadline, S2 + 2)
    E1 = spread(e1, S2 + 1, pos["m1"] - 2, "e1", emitted(raw_free(1)))
    E2 = spread(e2, pos["m1"] - 1, pos["m2"] - 2, "e2")
    B.need(pos["m1"], E1[-1:] + raw_free(2)); B.need(pos["m2"], E2[-1:] + raw_free(3))
    ad = []; b = ad.append
    vK0, vK1, vK2, vK3, vK4, vK5 = [V(112 + i) for i in range(6)]
    n_ = V(34); g_ = V(35); x2 = V(38); e_ = V(39); j_ = V(40); t3 = V(41)
    b(valu("v_and_b32", n_, 31, vLANE)); b(valu("v_lshrrev_b32", g_, 5, vLANE))
    b(salu("s_mul_i32", sT[0], sR2, 23680)); b(salu("s_mul_i32", sT[1], sC2, 11840)); b(salu("s_add_u32", sT[0], sT[0], sT[1]))
    b(salu("s_mul_i32", sT[2], sW, 5920))
    b(salu("s_mul_i32", sT[3], sR2, 96 * 176)); b(salu("s_mul_i32", sT[4], sC2, 48 * 176 + 72)); b(salu("s_add_u32", sT[3], sT[3], sT[4]))
    b(salu("s_mul_i32", sE[3], sW, 1536)); b(salu("s_add_u32", sE[2], sE[3], sE[2]))
    b(salu("s_mul_i32", sE[3], sRB, 6144)); b(salu("s_add_u32", sE[3], sE[3], sE[2]))
    b(valu("v_mul_u32_u24", vK0, 160, n_)); b(valu("v_lshl_add_u32", vK0, g_, 4, vK0)); b(valu("v_add_u32", vK0, sT[0], vK0))
    b(valu("v_mov_b32", vX3, OOB))
    b(valu("v_add_u32", vK2, 20 * 160, vK0))
    b(valu("v_subrev_u32", x2, 12, n_)); b(I(f"v_cmp_gt_u32 vcc, 5, {x2}", VALU, rd=[x2], wr=["vcc"]))
    b(valu("v_add_u32", vK1, 28 * 160, vK0))
    b(valu("v_subrev_u32", x2, 4, n_))
    b(valu("v_cndmask_b32", vK2, vX3, vK2, "vcc", rd_extra=["vcc"]))
    b(I(f"v_cmp_gt_u32 vcc, 4, {x2}", VALU, rd=[x2], wr=["vcc"]))
    b(valu("v_cndmask_b32", vK1, vX3, vK1, "vcc", rd_extra=["vcc"]))
    b(I(f"v_cmp_eq_u32 vcc, 16, {n_}", VALU, rd=[n_], wr=["vcc"]))
    b(valu("v_cndmask_b32", vK1, vK1, vK2, "vcc", rd_extra=["vcc"]))
    b(I(f"v_cmp_gt_u32 vcc, 32, {vLANE}", VALU, rd=[vLANE], wr=["vcc"]))
    b(valu("v_cndmask_b32", vK3, vX3, vK0, "vcc", rd_extra=["vcc"]))
    b(valu("v_cndmask_b32", vK4, vX3, vK1, "vcc", rd_extra=["vcc"]))
    b(valu("v_cndmask_b32", vK5, vX3, vK2, "vcc", rd_extra=["vcc"]))
    vS = [[V(118 + 2 * p_ + hp) for hp in range(2)] for p_ in range(3)]
    vAMa = [V(22 + p_) for p_ in range(3)]; vAMz = V(25); vG = [V(26 + p_) for p_ in range(3)]
    for p_ in range(3):
        dp_ = x2
        b(valu("v_add_u32", e_, 64 * p_, vLANE))
        b(valu("v_mul_u32_u24", j_, 57, e_)); b(valu("v_lshrrev_b32", j_, 9, j_))
        b(valu("v_mul_u32_u24", dp_, 9, j_)); b(valu("v_sub_u32", dp_, e_, dp_))
        b(valu("v_mul_u32_u24", vS[p_][0], 160, j_)); b(valu("v_lshl_add_u32", vS[p_][0], dp_, 3, vS[p_][0])); b(valu("v_add_u32", vS[p_][0], sT[2], vS[p_][0]))
        b(valu("v_add_u32", vS[p_][1], 18 * 160 + 72, vS[p_][0]))
        b(valu("v_mul_u32_u24", vAMa[p_], 176, j_)); b(valu("v_lshl_add_u32", vAMa[p_], dp_, 2, vAMa[p_])); b(valu("v_add_u32", vAMa[p_], sT[3], vAMa[p_]))
        if p_ == 2:
            b(valu("v_add_u32", t3, 18 * 160, vS[p_][0]))
            b(I(f"v_cmp_eq_u32 vcc, 18, {j_}", VALU, rd=[j_], wr=["vcc"]))
            b(valu("v_cndmask_b32", vS[p_][0], vS[p_][0], t3, "vcc", rd_extra=["vcc"]))
            b(valu("v_add_u32", t3, 4 * 176, vAMa[p_]))
            b(valu("v_cndmask_b32", vAMz, vX3, t3, "vcc", rd_extra=["vcc"]))
            b(I(f"v_cmp_gt_u32 vcc, 19, {j_}", VALU, rd=[j_], wr=["vcc"]))
            b(valu("v_lshlrev_b32", vG[0], 4, vLANE)); b(valu("v_lshlrev_b32", vG[1], 3, vLANE))
            b(valu("v_cndmask_b32", vAMa[p_], vX3, vAMa[p_], "vcc", rd_extra=["vcc"]))
            b(valu("v_cndmask_b32", vS[p_][0], vLANE, vS[p_][0], "vcc", rd_extra=["vcc"]))
            b(valu("v_cndmask_b32", vS[p_][1], vLANE, vS[p_][1], "vcc", rd_extra=["vcc"]))
            b(valu("v_and_b32", vS[p_][0], -8, vS[p_][0])); b(valu("v_and_b32", vS[p_][1], -8, vS[p_][1]))
    AD = []
    for k, ins in enumerate(ad):
        it = Item(lambda ins=ins: [ins], VAL, ins.cost, earliest=pos["m2"] - 1, deadline=pos["m2"] + (6 * k) // len(ad), name="ad"); AD.append(it)
    AD[0].cond = emitted(raw_free(4))
    KVT = 0
    kw = []
    for j in range(4):
        kw.append(ds_wr(vK0, PD["01"][4 * j:4 * j + 4], KVT + 32 * j)); kw.append(ds_wr(vK1, PD["04"][4 * j:4 * j + 4], KVT + 32 * j))
    kw.append(ds_wr(vK3, PD["41"][0:4], KVT + 128)); kw.append(ds_wr(vK4, PD["44"][0:4], KVT + 128)); kw.append(ds_wr(vK5, PD["44"][4:8], KVT + 5920 + 128))
    nk1 = len(kw)
    for j in range(4): kw.append(ds_wr(vK0, PD["23"][4 * j:4 * j + 4], KVT + 5920 + 32 * j))
    for j in range(4): kw.append(ds_wr(vK2, PD["24"][4 * j:4 * j + 4], KVT + 5920 + 32 * j))
    kw.append(ds_wr(vK3, PD["43"][4:8], KVT + 5920 + 128))
    KW = []
    for k, ins in enumerate(kw):
        e = pos["m2"] + 7 if k < nk1 else pos["m2"] + 5 + 4 * min(2, (k - nk1) // 4)
        it = item(ins, earliest=e, deadline=max(e, pos["m2"] + 7 + (7 * k) // len(kw)), name=f"kw{k}"); it.on_emit = pub; KW.append(it)
    KW[0].cond = lambda g: len(B.retired) == 4
    bk = pos["m2e"] + 5
    sc.bars.add(bk)
    R0 = V(64, 12); R1 = V(80, 12)
    CP = []
    for hp in range(2):
        for p_ in range(3):
            k = 2 * (3 * hp + p_)
            CP.append(item(ds_rd(R0[k:k + 2], vS[p_][hp], KVT), deadline=bk + 1, name="cr")); CP.append(item(ds_rd(R1[k:k + 2], vS[p_][hp], KVT + 23680), deadline=bk + 1, name="cr"))
    for it in CP: it.on_emit = pub
    CR = list(CP)
    CP[0].cond = lambda g: all(w.pub is not None for w in KW)
    for k in range(12): CP.append(item(valu("v_add_f32", R0[k], R0[k], R1[k]), earliest=bk + 3, deadline=bk + 4, name="cadd"))
    for k in range(6): CP.append(item(valu("v_cvt_pk_bf16_f32", R0[k], R0[2 * k], R0[2 * k + 1]), deadline=bk + 4, name="ccvt"))
    ats = [buf_st(R0[0:4], vG[0], SRD_WS, sE[3], aux="sc1"), buf_st(R0[4:6], vG[1], SRD_WS, sE[3], off=1024, aux="sc1")]
    for ins in ats: CP.append(item(ins, deadline=bk + 5, name="kvst"))
    for ins in stamp(): sc.fix(S2 - 1, Item(lambda ins=ins: [ins], PRE, 1))
    for ins in stamp(): CP.append(Item(lambda ins=ins: [ins], PRE, 1, deadline=bk + 10, name="st"))
    gw = min([x for x in sorted(sc.bars) if x >= bk + 9 + sigdelay]) - 1
    wv = item(wait_ops(vm_ops=ats), earliest=gw, deadline=gw, name="atwait"); CP.append(wv)
    sg = signal(128, V(124), V(125))
    CP.append(item(sg[0], earliest=gw, deadline=gw, name="sg")); CP.append(item(sg[1], earliest=gw, deadline=gw, name="sg"))
    CP.append(item(sg[2], earliest=gw + 1, deadline=gw + 1, name="sig"))
    AM = 0; OIM = 0; PQ = BLK
    ZF = [item(valu("v_lshlrev_b32", V(126), 4, vTID), earliest=gw + 2, name="zf")]
    for k in range(9):
        ZF.append(item(ds_wr(V(126), Z, AM + 4096 * k), name="zf"))
    ZF[1].cond = lambda g: all(r.pub is not None for r in CR)
    sc.add(Stream("ep", E1 + E2 + AD + KW + CP + ZF))
    Stamps.n -= 2 if Stamps.on else 0
    Stamps.n -= 0
    body = B.finish(P, "ATTN-G1", verbose)
    assert wv.gap == gw and CP[-1].gap == gw + 1, (wv.gap, gw)
    Stamps.n += 2 if Stamps.on else 0
    E = []; a = E.append
    E += stamp()
    a(wait(lg=0)); a(bar())

    WL = 40 * 1024
    vD2b = [V(16), V(17)]
    E += dma_voff(vD2b, 1152)
    sCPX = sE[1]
    a(raw(f"s_cmp_ge_u32 {sRB}, 9", SALU, rd=[sRB])); a(salu("s_cselect_b32", sT[0], 9, 0)); a(salu("s_sub_u32", sCPX, sRB, sT[0]))
    a(salu("s_lshl_b32", sT[0], sCPX, 7)); a(salu("s_add_u32", sB2, sB2, sT[0]))
    a(I(f"v_cmp_gt_u32 vcc, 64, {vTID}", VALU, rd=[vTID], wr=["vcc"]))
    a(valu("v_cndmask_b32", V(18), vX3, vD2b[0], "vcc", rd_extra=["vcc"])); a(valu("v_cndmask_b32", V(19), vX3, vD2b[1], "vcc", rd_extra=["vcc"]))
    wod = []
    for k in range(3):
        a(salu("s_add_u32", "m0", sM0B, hex(WL + k * 8192))); a(salu("s_add_u32", sSO[k & 1], sB2, hex(k * 64 * 1152)))
        for h in range(2):
            d = dma(vD2b[h] if k < 2 else V(18 + h), SRD_W2, sSO[k & 1], off=1024 * h); a(d); wod.append(d)
    vPW = V(180); vPW4 = V(181); vPR = V(182)
    n_ = vX0; g_ = vX1
    a(valu("v_and_b32", n_, 31, vLANE)); a(valu("v_lshrrev_b32", g_, 5, vLANE))
    a(salu("s_mul_i32", sT[0], sW, 80 * 136)); a(salu("s_add_u32", sT[0], sT[0], hex(PQ)))
    a(valu("v_mul_u32_u24", vPW, 136, n_)); a(valu("v_lshl_add_u32", vPW, g_, 3, vPW)); a(valu("v_add_u32", vPW, sT[0], vPW))
    a(valu("v_add_u32", vPW4, 48 * 136, vPW))
    a(valu("v_cndmask_b32", vPW4, vX3, vPW4, S(58, 2)))
    a(valu("v_bfe_u32", vX2, vLANE, 2, 2)); a(valu("v_lshl_add_u32", vX2, g_, 3, vX2)); a(valu("v_mul_u32_u24", vPR, 136, vX2))
    a(valu("v_and_b32", vX2, 3, vLANE)); a(valu("v_lshl_add_u32", vPR, vX2, 3, vPR))
    a(valu("v_bfe_u32", vX2, vLANE, 4, 1)); a(valu("v_lshl_add_u32", vPR, vX2, 5, vPR)); a(valu("v_add_u32", vPR, sT[0], vPR))
    vAR = V(183); vOW = V(184); vOR = V(185); vOW2 = V(186)
    a(salu("s_mul_i32", sT[0], sC2, 96 * 176))
    a(valu("v_mul_u32_u24", vAR, 176, n_)); a(valu("v_lshl_add_u32", vAR, g_, 4, vAR)); a(valu("v_add_u32", vAR, sT[0], vAR))
    a(salu("s_mul_i32", sT[0], sR2, 64 * 304))
    a(valu("v_mul_u32_u24", vX2, 304, n_)); a(valu("v_add_u32", vX2, sT[0], vX2))
    a(valu("v_lshl_add_u32", vOR, g_, 4, vX2))
    a(salu("s_mul_i32", sT[0], sC2, 144)); a(valu("v_lshl_add_u32", vOW, g_, 3, vX2)); a(valu("v_add_u32", vOW, sT[0], vOW))
    a(I(f"v_cmp_gt_u32 vcc, 32, {vLANE}", VALU, rd=[vLANE], wr=["vcc"]))
    a(valu("v_cndmask_b32", vOW2, vX3, vOW, "vcc", rd_extra=["vcc"]))
    def pq_writes(src, addr, doff):
        return [ds_wr(addr, src[8 * i + 2 * j:8 * i + 2 * j + 2], doff * 136 + 64 * i + 16 * j) for i in range(2) for j in range(4)]
    E += pq_writes(PK["4A"], vPW4, 0)
    PK[5] = V(128, 16); PK[6] = V(144, 16)
    for tile, doff in ((5, 0), (6, 32)):
        et = ep_tile(tile, tile, phi_pair); pw = pq_writes(PK[tile], vPW, doff)
        n = len(et) // 8
        for k in range(8):
            E += et[k * n:(k + 1) * n]; a(pw[k])
    QF = lambda t, i: V(64 + 4 * (2 * t + i), 4)
    for t in range(5):
        for i in range(2):
            for h in range(2): a(ds_tr(QF(t, i)[2 * h:2 * h + 2], vPR, (16 * t + 4 * h) * 136 + 64 * i))
    vWR = V(170); vWS = V(171); vWS2 = V(172)
    a(wait_ops(vm_ops=wod)); a(bar())
    a(valu("v_bfe_u32", vX0, vLANE, 2, 2)); a(valu("v_lshrrev_b32", vX1, 4, vLANE))
    a(valu("v_lshl_add_u32", vX2, vX1, 3, vX0)); a(valu("v_lshlrev_b32", vWR, 7, vX2))
    a(valu("v_bfe_u32", vX2, vLANE, 3, 1)); a(valu("v_xor_b32", vX2, sR2, vX2)); a(valu("v_lshl_add_u32", vWR, vX2, 6, vWR))
    a(valu("v_and_b32", vX2, 1, vLANE)); a(valu("v_lshl_add_u32", vWR, vX2, 4, vWR))
    a(valu("v_bfe_u32", vX2, vLANE, 1, 1)); a(valu("v_lshl_add_u32", vWR, vX2, 3, vWR))
    a(salu("s_lshl_b32", sT[0], sC2, 5)); a(salu("s_add_u32", sT[0], sT[0], hex(WL))); a(valu("v_add_u32", vWR, sT[0], vWR))
    WF = V(188, 20)
    for m in range(5):
        for h in range(2): a(ds_tr(WF[4 * m + 2 * h:4 * m + 2 * h + 2], vWR, m * 4096 + h * 512))
    a(valu("v_lshlrev_b32", vWS, 4, vLANE))
    a(I(f"v_cmp_gt_u32 vcc, 32, {vLANE}", VALU, rd=[vLANE], wr=["vcc"]))
    a(valu("v_cndmask_b32", vWS2, vX3, vWS, "vcc", rd_extra=["vcc"]))
    a(salu("s_lshl_b32", sT[0], sCPX, 2)); a(salu("s_add_u32", sT[0], sT[0], sW)); a(salu("s_mul_i32", sT[0], sT[0], 18432))
    a(salu("s_mul_i32", sT[2], sHG, 18 * 256)); a(salu("s_add_u32", sT[0], sT[0], sT[2])); a(salu("s_add_u32", sT[0], sT[0], hex(WOFF)))
    a(salu("s_mov_b32", sT[3], sT[0])); a(salu("s_add_u32", sT[4], sT[3], 4096))
    for m in range(4): a(buf_st(WF[4 * m:4 * m + 4], vWS, SRD_WS, sT[3], off=1024 * m, aux=Cfg.staux))
    a(buf_st(WF[16:20], vWS2, SRD_WS, sT[4], aux=Cfg.staux))
    E += stamp()
    E += poll("L_pd", 128, 16)
    a(bar())
    E += stamp()
    GL = [V(208, 48), V(116, 48)]
    R0 = V(104, 12)
    a(salu("s_mov_b32", sT[0], sRB))
    gl = []
    for k in range(16):
        r = GL[k // 8][6 * (k % 8):6 * (k % 8) + 6]; so = sSO[k & 1]
        a(salu("s_mul_i32", so, sT[0], 6144)); a(salu("s_add_u32", so, so, sE[2]))
        a(buf_ld(r[0:4], vG[0], SRD_WS, so, aux="sc1")); a(buf_ld(r[4:6], vG[1], SRD_WS, so, off=1024, aux="sc1"))
        a(salu("s_add_u32", sT[0], sT[0], 1)); a(salu("s_and_b32", sT[0], sT[0], 15))
        gl.append(r)
    for k, r in enumerate(gl):
        for j in range(6):
            if k == 0:
                a(valu("v_lshlrev_b32", R0[2 * j], 16, r[j])); a(valu("v_and_b32", R0[2 * j + 1], sMASK, r[j]))
            else:
                t_ = V(34 + 2 * (j & 1), 2)
                a(valu("v_lshlrev_b32", t_[0], 16, r[j])); a(valu("v_and_b32", t_[1], sMASK, r[j]))
                a(valu("v_pk_add_f32", R0[2 * j:2 * j + 2], R0[2 * j:2 * j + 2], t_))
    for k in range(0, 12, 2): a(valu("v_cvt_pk_bf16_f32", R0[k], R0[k], R0[k + 1]))
    for hp in range(2):
        for p_ in range(3):
            k = 2 * (3 * hp + p_)
            a(ds_wr(vAMa[p_], R0[k], AM + hp * (24 * 176 + 36)))
            if p_ == 2: a(ds_wr(vAMz, R0[k], AM + hp * (24 * 176 + 36)))
    a(wait(lg=0)); a(bar())
    AF = lambda tau, k: V(116 + 4 * (3 * tau + k), 4)
    for tau in range(3):
        for k in range(3): a(ds_rd(AF(tau, k), vAR, AM + tau * 32 * 176 + (tau + k) * 32))
    NV = [V(208, 48), None]
    ND1 = [V(152, 16), V(188, 16), V(44, 16)]
    def nvr(i, r): return NV[0][r] if i == 0 else ND1[r // 16][r % 16]
    mm = {0: [], 1: []}
    for i in range(2):
        for tau in range(3):
            d = NV[0][16 * tau:16 * tau + 16] if i == 0 else ND1[tau]
            for k in range(3): mm[i].append(mfma32(d, AF(tau, k), QF(tau + k, i), d if k else 0))
    def oep(i):
        o = []; w = []
        for hl in range(4): o.append(valu("v_add_f32", nvr(i, 12 * hl + 10), f32(1e-6), nvr(i, 12 * hl + 10)))
        for hl in range(4): o.append(trans("v_rcp_f32", nvr(i, 12 * hl + 10), nvr(i, 12 * hl + 10)))
        for hl in range(4):
            for r in range(10): o.append(valu("v_mul_f32", nvr(i, 12 * hl + r), nvr(i, 12 * hl + r), nvr(i, 12 * hl + 10)))
            for r in range(5): o.append(valu("v_cvt_pk_bf16_f32", nvr(i, 12 * hl + r), nvr(i, 12 * hl + 2 * r), nvr(i, 12 * hl + 2 * r + 1)))
        va = V(168 + i)
        o.append(valu("v_add_u32", va, hex(OIM + i * 32 * 304), vOW))
        for hl in range(4):
            for grp in range(2):
                o0 = (36 * hl + 16 * grp) // 4
                d0, d1 = nvr(i, 12 * hl + 2 * grp), nvr(i, 12 * hl + 2 * grp + 1)
                w.append(I(f"ds_write2_b32 {va}, {d0}, {d1} offset0:{o0} offset1:{o0+1}", LDSW, rd=[va, d0, d1], cost=3))
            w.append(ds_wr(vOW2, nvr(i, 12 * hl + 4), OIM + i * 32 * 304 + 36 * hl + 32))
        return o, w
    E += mm[0]
    a(wait(lg=0)); a(bar())
    o0_, w0_ = oep(0); o1_, w1_ = oep(1)
    E += mm[1][:2]
    k = 0
    for m in mm[1][2:]:
        a(m); E += o0_[k:k + 10]; k += 10
    E += o0_[k:] + w0_ + o1_ + w1_
    a(wait(lg=0))
    a(bar())
    a(valu("v_and_b32", vX0, 15, vLANE)); a(valu("v_lshrrev_b32", vX1, 4, vLANE))
    a(valu("v_mul_u32_u24", vX0, 304, vX0)); a(valu("v_lshl_add_u32", vX0, vX1, 4, vX0))
    a(salu("s_mul_i32", sT[0], sW, 32 * 304)); a(valu("v_add_u32", vX0, sT[0], vX0))
    OP = V(64, 40)
    for nt in range(2):
        for m in range(5): a(ds_rd(OP[20 * nt + 4 * m:20 * nt + 4 * m + 4], vX0, OIM + nt * 16 * 304 + m * 64))
    a(salu("s_lshl_b32", sT[0], sRB, 2)); a(salu("s_add_u32", sT[0], sT[0], sW)); a(salu("s_mul_i32", sT[0], sT[0], 36864))
    a(salu("s_add_u32", sT[0], sT[0], sT[2])); a(salu("s_add_u32", sT[0], sT[0], hex(OOFF)))
    a(salu("s_add_u32", sT[1], sT[0], 4096)); a(salu("s_add_u32", sT[3], sT[0], 18432)); a(salu("s_add_u32", sT[4], sT[0], 18432 + 4096))
    E += stamp()
    for nt in range(2):
        for m in range(4): a(buf_st(OP[20 * nt + 4 * m:20 * nt + 4 * m + 4], vWS, SRD_WS, sT[3 * nt], off=1024 * m, aux=Cfg.staux))
        a(buf_st(OP[20 * nt + 16:20 * nt + 20], vWS2, SRD_WS, sT[3 * nt + 1], aux=Cfg.staux))
    tail = stamp()
    return P + body + E + tail + stamp_dump()
```

```python
from fw import *
from sched import *
import struct, math
def f32(x): return "0x%08x" % struct.unpack("<I", struct.pack("<f", x))[0]

SLAB = 2359296
sKA = S(0, 2); sWG = S(2)
SRD_X = S(4, 4); SRD_W1 = S(8, 4); SRD_W2 = S(12, 4); SRD_WS = S(16, 4); SRD_B = S(20, 4); SRD_DBG = S(24, 4)
sRB = S(28); sFS = S(29); sW = S(30); sR2 = S(31); sC2 = S(32); sJ8 = S(33)
sT = [S(34 + i) for i in range(6)]
sXB = S(40); sB1 = S(41); sB2 = S(42)
sM0B = S(43)
sSO = [S(44), S(45)]
sSTB = S(46); sST = [S(47), S(48)]
sC1 = S(49); sONE = S(50); sMASK = S(51); sROLE = S(52); sXH = S(53)
sE = [S(54 + i) for i in range(10)]
sP = S(64, 16); sP2 = S(80, 4)
def rot_table(dsts, rot, n, mul, base, tmp):
    p = [salu("s_mov_b32", tmp, rot)]
    for i in range(len(dsts)):
        p.append(salu("s_mul_i32", dsts[i], tmp, hex(mul)))
        if base is not None: p.append(salu("s_add_u32", dsts[i], dsts[i], base))
        if i + 1 < len(dsts):
            p.append(salu("s_add_u32", tmp, tmp, 1))
            p.append(raw(f"s_cmp_ge_u32 {tmp}, {n}", SALU, rd=[tmp]))
            p.append(salu("s_cselect_b32", tmp, 0, tmp))
    return p
UNIT = 8192

def srd(dst, ptr, nbytes):
    return [salu("s_mov_b32", dst[0], ptr[0]), salu("s_mov_b32", dst[1], ptr[1]),
            salu("s_mov_b32", dst[2], hex(nbytes)), salu("s_mov_b32", dst[3], "0x00020000")]

STAMP_REGS = [100, 84, 86, 88, 90, 92, 94, 96, 80, 82, 98, 4]
class Cfg:
    pcn = 0
    kname = 'recurrent_scan__linear_attn_block__dense_activation_gelu__prompt_kernel'
    staux = 'sc1'
class Stamps:
    on = False
    op = 's_memtime'
    n = 0
def stamp():
    if not Stamps.on: return []
    r = STAMP_REGS[Stamps.n]; Stamps.n += 1
    return [I(f"{Stamps.op} s[{r}:{r+1}]", SMEM, wr=[S(r, 2)])]
def rstamp(k):
    if not Stamps.on: return []
    r = STAMP_REGS[k]
    return [I(f"s_memrealtime s[{r}:{r+1}]", SMEM, wr=[S(r, 2)])]
def stamp_dump():
    if not Stamps.on: return []
    Stamps.n = 9
    p = [wait(vm=0, lg=0)] + stamp() + rstamp(11) + [wait(lg=0)]
    for k in range(12):
        p.append(valu("v_mov_b32", V(64 + k), S(STAMP_REGS[k])))
    t = sT[0]
    p.append(salu("s_lshl_b32", t, S(2), 2)); p.append(salu("s_add_u32", t, t, sW)); p.append(salu("s_lshl_b32", t, t, 6))
    p.append(salu("s_add_u32", t, t, hex(48 << 20)))
    p.append(valu("v_mov_b32", V(63), 0))
    p.append(raw("s_mov_b64 exec, 1", SALU))
    for k in range(0, 12, 4):
        p.append(buf_st(V(64 + k, 4), V(63), SRD_WS, t, off=4 * k))
    Stamps.n = 1
    return p

vTID = V(0); vLANE = V(1)
vTR1 = [V(2), V(3), V(4)]; vTR2 = [V(5), V(6), V(7)]
vX0 = V(8)
vXR = [V(9 + i) for i in range(4)]
vHW = V(13); vHR = V(14); vBI = V(15)
vD1 = [V(16), V(17)]; vD2 = [V(18), V(19)]; vSTO = [V(20), V(21)]
vXL = [V(22 + i) for i in range(4)]
vSTAT = [V(26 + 2 * q, 2) for q in range(4)]
vT = [V(34 + i) for i in range(6)]
vC0 = V(40); vX1 = V(41); vX2 = V(42); vX3 = V(43)
NA = 5
vA = [V(44 + 4 * i, 4) for i in range(NA)]
def vRAW(u, q): return V(64 + 16 * u + 4 * q, 4)
vXW = [V(240 + i) for i in range(4)]
vPF = [V(244), V(245), V(246)]; vDUM = V(247)
def xfrag(t, i): return A(4 * (2 * t + i), 4) if t < 32 else V(64 + 4 * (2 * (t - 32) + i), 4)
BLK = 96 * 1024

def entry_lane_setup():
    p = []; a = p.append
    l = vLANE
    a(valu("v_and_b32", vLANE, 63, vTID))
    a(valu("v_and_b32", vX0, 7, vTID))
    a(valu("v_bfe_u32", vX1, vTID, 3, 3))
    a(valu("v_lshrrev_b32", vX3, 6, vTID))
    a(valu("v_lshl_add_u32", vX2, vX3, 5, vX1))
    a(valu("v_mul_u32_u24", vX2, 1152, vX2))
    a(valu("v_lshl_add_u32", vX2, vX0, 4, vX2))
    for q in range(4):
        a(salu("s_add_u32", sT[2], sROLE, q))
        a(salu("s_and_b32", sT[2], sT[2], 3))
        a(salu("s_mul_i32", sT[3], sT[2], 9216))
        a(valu("v_add_u32", vXL[q], sT[3], vX2))
    a(salu("s_mul_i32", sXB, sRB, 147456))
    return p

def lane_setup(vXW=vXW):
    p = []; a = p.append
    l = vLANE
    a(valu("v_and_b32", vX0, 3, l))
    a(valu("v_lshlrev_b32", vX0, 3, vX0))
    a(valu("v_bfe_u32", vX1, l, 4, 1))
    a(valu("v_lshl_add_u32", vX0, vX1, 5, vX0))
    a(valu("v_bfe_u32", vX1, l, 2, 2))
    a(valu("v_lshl_add_u32", vX0, vX1, 7, vX0))
    a(valu("v_bfe_u32", vX1, l, 3, 1))
    a(valu("v_xor_b32", vX1, sC2, vX1))
    a(valu("v_lshl_add_u32", vX0, vX1, 6, vX0))
    a(valu("v_lshrrev_b32", vX2, 5, l))
    a(valu("v_lshl_add_u32", vTR1[0], vX2, 10, vX0))
    a(valu("v_lshl_add_u32", vTR2[0], vX2, 9, vX0))
    for k in (1, 2):
        a(valu("v_add_u32", vTR1[k], hex(65536 * k), vTR1[0]))
        a(valu("v_add_u32", vTR2[k], hex(65536 * k), vTR2[0]))
    a(valu("v_and_b32", vX0, 7, l))
    a(valu("v_lshrrev_b32", vX1, 3, l))
    a(valu("v_xor_b32", vX3, vX1, vX0))
    a(valu("v_lshlrev_b32", vX3, 4, vX3))
    a(valu("v_and_b32", vT[0], 1, vX0))
    a(valu("v_lshl_add_u32", vX3, vT[0], 9, vX3))
    a(valu("v_lshrrev_b32", vT[0], 1, vX0))
    a(valu("v_lshl_add_u32", vX3, vT[0], 10, vX3))
    a(salu("s_lshl_b32", sT[0], sW, 12))
    a(salu("s_add_u32", sT[0], sT[0], hex(BLK)))
    for q in range(4):
        a(salu("s_add_u32", sT[2], sROLE, q))
        a(salu("s_and_b32", sT[2], sT[2], 3))
        a(salu("s_lshl_b32", sT[4], sT[2], 7))
        a(salu("s_add_u32", sT[4], sT[4], sT[0]))
        a(valu("v_add_u32", vXW[q], sT[4], vX3))
    a(valu("v_lshlrev_b32", vX1, 4, l))
    a(valu("v_add_u32", vHW, sT[0], vX1))
    a(salu("s_lshl_b32", sT[0], sR2, 13))
    a(salu("s_add_u32", sT[0], sT[0], hex(BLK)))
    a(valu("v_add_u32", vHR, sT[0], vX1))
    for tt in range(4):
        a(valu("v_add_u32", vX3, 2 * tt, vX2))
        a(valu("v_xor_b32", vX3, l, vX3))
        a(valu("v_lshl_add_u32", vXR[tt], vX3, 4, sT[0]))
        if tt < 3: a(salu("s_add_u32", sT[0], sT[0], 1024))
    a(salu("s_mul_i32", sT[0], sR2, 2 * 36864))
    a(salu("s_lshl_b32", sT[1], sC2, 11))
    a(salu("s_add_u32", sT[0], sT[0], sT[1]))
    a(valu("v_add_u32", vSTO[0], sT[0], vX1))
    a(valu("v_add_u32", vSTO[1], 36864, vSTO[0]))
    a(salu("s_lshl_b32", sM0B, sW, 11))
    return p

def dma_voff(dst, stride):
    p = []; a = p.append
    a(valu("v_bfe_u32", vX2, vTID, 3, 3))
    a(valu("v_lshrrev_b32", vX1, 6, vTID))
    a(valu("v_lshl_add_u32", vX2, vX1, 4, vX2))
    a(valu("v_mul_u32_u24", vX2, stride, vX2))
    a(valu("v_bfe_u32", vX1, vTID, 4, 1))
    a(valu("v_lshlrev_b32", vX1, 2, vX1))
    a(valu("v_and_b32", vX0, 7, vTID))
    a(valu("v_xor_b32", vX0, vX0, vX1))
    a(valu("v_lshl_add_u32", dst[0], vX0, 4, vX2))
    a(valu("v_add_u32", dst[1], hex(8 * stride - 1024), dst[0]))
    return p

def touch(voff, srd_, soff, off=0):
    i = buf_ld(vDUM, voff, srd_, soff, off=off); i.wr = []
    return i

def norm_plain(r, st, t0, t1):
    return [valu("v_lshlrev_b32", t0, 16, r), valu("v_and_b32", t1, sMASK, r),
            valu("v_fma_f32", t0, t0, st[0], st[1]), valu("v_fma_f32", t1, t1, st[0], st[1]),
            valu("v_cvt_pk_bf16_f32", r, t0, t1)]
def norm_quad_pk(r, st, tp):
    p = []
    for j in range(4): p += [valu("v_lshlrev_b32", tp[2 * j], 16, r[j]), valu("v_and_b32", tp[2 * j + 1], sMASK, r[j])]
    for j in range(4): p.append(valu("v_pk_fma_f32", tp[2 * j:2 * j + 2], tp[2 * j:2 * j + 2], st, st, extra="op_sel:[0,0,1] op_sel_hi:[1,0,1]"))
    for j in range(4): p.append(valu("v_cvt_pk_bf16_f32", r[j], tp[2 * j], tp[2 * j + 1]))
    return p

def stats_finish(q, S4, Q4, scale=None):
    p = []; a = p.append
    a(valu("v_add_f32", S4[0], S4[0], S4[1])); a(valu("v_add_f32", Q4[0], Q4[0], Q4[1]))
    a(valu("v_add_f32", S4[2], S4[2], S4[3])); a(valu("v_add_f32", Q4[2], Q4[2], Q4[3]))
    a(valu("v_add_f32", S4[0], S4[0], S4[2])); a(valu("v_add_f32", Q4[0], Q4[0], Q4[2]))
    s, qq = S4[0], Q4[0]
    for ctl in ("quad_perm:[1,0,3,2]", "quad_perm:[2,3,0,1]", "row_half_mirror"):
        for r in (s, qq):
            a(valu("v_add_f32_dpp", r, r, r, extra=f"{ctl} row_mask:0xf bank_mask:0xf", dpp=True))
    st = vSTAT[q]
    a(valu("v_mul_f32", s, f32(1.0 / 576), s))
    a(valu("v_mul_f32", qq, f32(1.0 / 576), qq))
    a(I(f"v_fma_f32 {qq}, -{s}, {s}, {qq}", VALU, rd=[s, qq], wr=[qq]))
    a(valu("v_max_f32", qq, 0, qq))
    a(valu("v_add_f32", qq, f32(1e-5), qq))
    a(trans("v_rsq_f32", st[0], qq))
    if scale is not None: a(valu("v_mul_f32", st[0], f32(scale), st[0]))
    a(I(f"v_mul_f32_e64 {st[1]}, -{s}, {st[0]}", VALU, rd=[s, st[0]], wr=[st[1]]))
    return p

class Unit:
    def __init__(self, name, voff, srd_, sbase, const, m0b=None):
        self.m0b = m0b
        self.name, self.voff, self.srd, self.sbase, self.const = name, voff, srd_, sbase, const
        self.addr = None; self.first_read = 10**9; self.last_mfma = -1; self.dma_item = None

class Builder:
    def __init__(self, D=6, dma_pace=3, xf=None, nblk=4, m0b=None):
        self.xf = xf or xfrag; self.nblk = nblk; self.m0b = m0b or sM0B; self.xlast = None
        self.M = []; self.afr = []; self.units = []; self.umap = {}
        self.D = D; self.dma_pace = dma_pace
        self.needs = {}; self.xuse = {}
        self.nfrag = 0; self.blackout = []; self.retire = None; self.retired = {}; self.rounds = 1; self.ln_scale = None; self.xw = vXW
    def unit(self, key, *args):
        if key not in self.umap:
            self.umap[key] = Unit(key, *args); self.units.append(self.umap[key])
        return self.umap[key]
    def next_a(self, unit, mk_reads):
        a = vA[self.nfrag % NA]; self.nfrag += 1
        self.afr.append((unit, mk_reads, a, len(self.M)))
        return a
    def add(self, m, new_a=False, unit=None):
        if new_a: m.tag = "newA"
        if unit is not None: unit.last_mfma = len(self.M)
        self.M.append(m)
    def need(self, idx, its): self.needs.setdefault(idx, []).extend(its)
    def tr_std(self, unit, off, pat):
        def mk(a, h):
            ad = unit.addr + off + (h * 512 if pat == 1 else h * 1024)
            return ds_tr(a[2 * h:2 * h + 2], (vTR1 if pat == 1 else vTR2)[ad >> 16], ad & 0xffff)
        return mk
    def make_sched(self, bars, ring_units):
        sc = self.sc = Sched(self.M); sc.bars = set(bars)
        self.pro_reads = []
        for f, (u, mk, a, idx) in enumerate(self.afr):
            for h in range(2):
                def mk2(u=u, mk=mk, a=a, h=h):
                    assert u.addr is not None and u.dma_item.pub is not None, (u.name, sc.gap)
                    return [mk(a, h)]
                g = idx - self.D + h
                it = Item(mk2, MEM, 1, name=f"A{f}.{h}")
                u.first_read = min(u.first_read, g)
                if g < 0: self.pro_reads.append(it)
                else: sc.fix(g, it)
        ring = self.ring = LDSAlloc(ring_units); live = []
        def on_bar(g):
            for u in list(live):
                if u.last_mfma <= g:
                    live.remove(u)
                    if self.retire is not None and self.retire(u.addr, g): self.retired[u.addr] = g
                    else: ring.put(u.addr)
        sc.on_bar.append(on_bar)
        sb = sorted(sc.bars)
        def unit_items(u, n):
            so = sSO[n & 1]
            i1 = item(salu("s_add_u32", so, u.sbase, u.const if isreg(u.const) else hex(u.const)), name=f"so{u.name}")
            def mk_m0(u=u):
                u.addr = ring.get(); live.append(u)
                return [salu("s_add_u32", "m0", u.m0b or self.m0b, hex(u.addr))]
            i2 = Item(mk_m0, PRE, 1, cond=lambda g: ring.avail(), name=f"m0{u.name}")
            its = [i1, i2]
            pb = [b for b in sb if b <= u.first_read]
            dl = (pb[-1] if pb else -1) - 12
            i2.deadline = i1.deadline = dl - len(u.voff)
            for k, vo in enumerate(u.voff):
                d = dma(vo, u.srd, so, off=1024 * k)
                i3 = Item(lambda d=d: [d], MEM, 2.0, name=f"dma{u.name}.{k}", deadline=dl - len(u.voff) + 1 + k)
                i3.cond = lambda g, i2=i2, i3=i3: i2.gap is not None and i2.gap < g and (g >= i3.deadline or not any(a <= g < b for a, b in self.blackout))
                its.append(i3)
            u.dma_item = its[-1]
            return its
        self.allu = [unit_items(u, n) for n, u in enumerate(self.units)]
        self.npro = 0
        return sc
    def next_dma(self, maxn=10):
        if self.npro >= len(self.allu) or not self.ring.avail() or self.npro >= maxn: return []
        its = self.allu[self.npro]; self.npro += 1
        o = []
        for it in its:
            it.ins = it.make(); it.gap = -1; o += it.ins
        return o
    def ln_prologue(self, post, NPER=8, U3=2, tmp=V(208, 32), maxdma=10, n0=12, xso=None, dma_from=36):
        p = []; a = p.append
        loads = [(buf_ld(vRAW(u, q), vXL[q], SRD_X, sXB, off=128 * u) if xso is None else buf_ld(vRAW(u, q), vXL[q], SRD_X, xso[u])) for q in range(4) for u in range(9)]
        ptr = 0
        def issue(n=1):
            nonlocal ptr
            for _ in range(n):
                if ptr < 36: a(loads[ptr]); ptr += 1
                else:
                    ptr += 1
                    if ptr > dma_from: p.extend(self.next_dma(maxdma))
        issue(n0)
        p.extend(post)
        self.ln_w = {}; self.ln_done = set()
        S4, Q4, tp = tmp[0:4], tmp[4:8], tmp[8:16]
        cur = []
        avail = []
        pend_w = []
        def fill(n):
            nonlocal cur
            while n > 0:
                if not cur:
                    if not avail: return
                    avail.sort(); u, q = avail.pop(0)
                    cur = norm_quad_pk(vRAW(u, q), vSTAT[q], tp) + [(u, q)]
                x = cur.pop(0)
                if isinstance(x, tuple):
                    self.ln_done.add(x)
                    if x[0] < self.nblk: pend_w.append(x)
                else: a(x); n -= 1
                if cur and isinstance(cur[0], tuple):
                    x = cur.pop(0); self.ln_done.add(x)
                    if x[0] < self.nblk: pend_w.append(x)
        def flush_w():
            for (u, q) in pend_w:
                w = ds_wr(self.xw[q], vRAW(u, q), u * 16384); a(w); self.ln_w[(u, q)] = w
            pend_w.clear()
        for q in range(4):
            for u in range(9):
                r = vRAW(u, q)
                a(wait_ops(regs_ready=[r]))
                issue(1); flush_w()
                for j in range(4):
                    a(valu("v_dot2_f32_bf16", S4[j], r[j], sONE, S4[j] if u else 0))
                    a(valu("v_dot2_f32_bf16", Q4[j], r[j], r[j], Q4[j] if u else 0))
                fill(NPER)
            if q == 3: p.extend(stamp())
            p.extend(stats_finish(q, S4, Q4, self.ln_scale))
            avail += [(u, q) for u in range(9)]
        if cur: fill(len(cur) - 1)
        while any((u, q) not in self.ln_done for u in range(U3) for q in range(4)):
            fill(16); flush_w(); issue(1)
        flush_w()
        self.U3 = U3
        return p
    def first_barrier(self, extra_lg=()):
        sc = self.sc
        fb = min(sc.bars); vm0 = []
        for u in self.units:
            if u.first_read < fb:
                assert u.dma_item.gap is not None, u.name
                vm0 += u.dma_item.ins; u.dma_item.pub = -1
        sc.dma_need = sorted([(u.first_read, u.dma_item) for u in self.units if u.dma_item.pub is None], key=lambda x: x[0])
        sc.add(Stream("dma", [it for its in self.allu[self.npro:] for it in its], pace=self.dma_pace, prio=True))
        return [wait_ops(vm_ops=vm0, lg_ops=list(extra_lg) + list(getattr(self, 'ln_w', {}).values())), bar()]
    def ln_streams(self, P):
        sc = self.sc; xuse = self.xuse
        sb = sorted(sc.bars)
        xr_items = {}; ln_items = []; xr_stream = []; self.xw_items = {}
        pub = lambda it, g: sc.to_publish.append(it)
        for U in range(9 * self.rounds):
            u = U % 9
            nb = self.nblk; b = U % nb; wits = []
            pb = [x for x in sb if x <= xuse[4 * U] - 4]
            dl = (pb[-1] if pb else 0) - 2
            for q in range(4):
                if (U, q) in self.ln_w: continue
                if U < 9 and (u, q) not in self.ln_done:
                    for j in range(4):
                        for ins in norm_plain(vRAW(u, q)[j], vSTAT[q], vT[2], vT[3]):
                            ln_items.append(item(ins, deadline=dl - 1 - (3 - q), name=f"ln{u}"))
                w = item(ds_wr(self.xw[q], vRAW(u, q), b * 16384), deadline=dl - (3 - q), name=f"xw{U}.{q}")
                if U >= nb:
                    w.cond = lambda g, prev=xr_items[U - nb]: all(r.pub is not None for r in prev)
                w.on_emit = pub
                wits.append(w); ln_items.append(w)
            self.xw_items[U] = wits
            rs = []
            for tt in range(4):
                for i in range(2):
                    r = item(ds_rd(self.xf(4 * U + tt, i), vXR[tt], b * 16384 + i * 4096), deadline=xuse[4 * U + tt] - 3, name=f"xr{U}.{tt}.{i}")
                    r.cond = lambda g, wits=wits: all(w.pub is not None for w in wits)
                    r.on_emit = pub
                    if self.xlast is not None and U >= 2: r.earliest = self.xlast[4 * (U - 2) + tt]
                    rs.append(r); self.need(xuse[4 * U + tt], [r])
            xr_items[U] = rs
            if U < self.U3:
                for r in rs:
                    r.ins = r.make(); r.gap = -1; P += r.ins; sc.to_publish.append(r)
            else: xr_stream += rs
        sc.add(Stream("ln", ln_items)); sc.add(Stream("xr", xr_stream))
        self.ln_items = ln_items
        return {b: xr_items[max(u for u in range(9) if u % self.nblk == b)] for b in range(self.nblk)}
    def release_blocks(self, last_user):
        pend = dict(last_user)
        def chk(g):
            for b, rs in list(pend.items()):
                if all(r.pub is not None for r in rs):
                    del pend[b]
                    for k in range(2): self.ring.put(BLK + b * 16384 + k * UNIT)
        self.sc.on_bar.append(chk)
    def y_stream(self, passes, pace=3, slack=40):
        y_items = []; res = []
        for n, (acc, end, off) in enumerate(passes):
            st = sST[n & 1]; dl = end + slack
            if isreg(off):
                y_items.append(item(salu("s_lshl_b32", st, off, 5), earliest=end - 6, deadline=dl, name="yso"))
                y_items.append(item(salu("s_add_u32", st, st, sSTB), deadline=dl, name="yso"))
            else: y_items.append(item(salu("s_add_u32", st, sSTB, hex(off)), earliest=end - 4, deadline=dl, name="yso"))
            sts = []
            for i in range(2):
                for h in range(2):
                    b = 16 * i + 8 * h
                    for j in range(4):
                        y_items.append(item(valu("v_cvt_pk_bf16_f32", acc[b + j], acc[b + 2 * j], acc[b + 2 * j + 1]),
                                            earliest=end + 2, deadline=dl, name=f"ycvt{n}"))
                    s_ = item(buf_st(acc[b:b + 4], vSTO[i], SRD_WS, st, off=h * 1024, aux=Cfg.staux), deadline=dl, name=f"yst{n}")
                    s_.cost = 4
                    y_items.append(s_); sts.append(s_)
            res.append(sts)
        self.sc.add(Stream("y", y_items, pace=pace))
        return res
    def finish(self, P, name, verbose=True):
        for it in self.pro_reads:
            it.ins = it.make(); it.gap = -1; P += it.ins
        body = self.sc.run()
        for idx, its in self.needs.items():
            for it in its:
                assert it.gap is not None and it.gap < idx, f"need {it.name} before mfma {idx}, got {it.gap}"
        if verbose: print(f"{name}: mfma={len(self.M)} bars={len(self.sc.bars)} overflow_slots={self.sc.overflow:.0f} late={len(self.sc.late)}", self.sc.late[:4])
        return body

def code_touch():
    pc = S(56, 2)
    p = [raw("s_getpc_b64 s[56:57]", SALU, wr=[pc]), label("L_pc%d" % Cfg.pcn),
         raw("s_sub_u32 s56, s56, L_pc%d-%s" % (Cfg.pcn, Cfg.kname), SALU, rd=[pc], wr=[pc]), raw("s_subb_u32 s57, s57, 0", SALU, rd=[pc], wr=[pc]),
         salu("s_lshr_b32", sT[0], sWG, 3), salu("s_lshl_b32", sT[0], sT[0], 2), salu("s_add_u32", sT[0], sT[0], sW), salu("s_mul_i32", sT[0], sT[0], 6),
         valu("v_min_u32", vX0, 5, vLANE), valu("v_add_u32", vX0, sT[0], vX0), valu("v_lshlrev_b32", vX0, 7, vX0),
         I("v_min_u32 %s, L_codeend-%s-4, %s" % (vX0, Cfg.kname, vX0), VALU, rd=[vX0], wr=[vX0]),
         I(f"global_load_dword {vDUM}, {vX0}, s[56:57]", VMLD, rd=[vX0, pc])]
    Cfg.pcn += 1
    return p
```

```python
from common import *

ACC = [V(208, 32), V(176, 32), V(144, 32), V(112, 32), V(64, 32)]
def hfrag(kk, i): return A(4 * (2 * kk + i), 4)
GC0 = -2.0 * math.sqrt(2.0 / math.pi) * math.log2(math.e)
GC1 = GC0 * 0.044715

GA = abs(GC1) ** (1.0 / 3.0)
GK = abs(GC0) / GA
def gelu_items(acc, i, q):
    out = []
    b = 16 * i + 8 * q
    t0, t1 = vT[0], vT[1]
    def nexp(t): return I(f"v_exp_f32_e64 {t}, -{t}", TRANS, rd=[t], wr=[t])
    for j in range(4):
        x0, x1 = acc[b + 2 * j], acc[b + 2 * j + 1]
        out += [valu("v_fma_f32", t0, x0, x0, sC1), valu("v_fma_f32", t1, x1, x1, sC1),
                valu("v_mul_f32", t0, x0, t0), valu("v_mul_f32", t1, x1, t1),
                nexp(t0), nexp(t1),
                valu("v_add_f32", t0, "1.0", t0), valu("v_add_f32", t1, "1.0", t1),
                trans("v_rcp_f32", t0, t0), trans("v_rcp_f32", t1, t1),
                valu("v_mul_f32", t0, x0, t0), valu("v_mul_f32", t1, x1, t1),
                valu("v_cvt_pk_bf16_f32", acc[b + j], t0, t1)]
    return out

def ffn_pre():
    p = []; a = p.append
    a(salu("s_mul_i32", sFS, sXH, 3)); a(salu("s_add_u32", sFS, sFS, sROLE)); a(salu("s_sub_u32", sFS, sFS, 1))
    a(salu("s_mul_i32", sB1, sFS, 768))
    return p

def build_ffn(N1=2, D=6, BARL=16, BARS=8, BARM=12, dma_pace=3, NPER=8, U3=2, ypace=3, pf=0, pf1=0, pf1b=80, pf2=170, pf2b=260, pause=40, rotT=False, rotC=True, yslack=40, dma_from=36, maxdma=10, tlb=True, ctouch=True, n0=12, verbose=True):
    B = Builder(D, dma_pace); B.ln_scale = GA
    P = []
    P += srd(SRD_X, sP[0:2], SLAB) + srd(SRD_W1, sP[8:10], 5308416)
    post = code_touch() if ctouch else []
    post += [salu("s_mov_b32", sONE, "0x3f803f80"), salu("s_mov_b32", sMASK, "0xffff0000")]
    post += srd(SRD_B, sP[10:12], 9216)
    vB = V(252); vB2 = V(254, 2)
    if rotT:
        post.append(raw(f"s_cmp_ge_u32 {sJ8}, 6", SALU, rd=[sJ8])); post.append(salu("s_cselect_b32", sT[0], 6, 0)); post.append(salu("s_sub_u32", sE[6], sJ8, sT[0]))
    else: post.append(salu("s_mov_b32", sE[6], 0))
    post.append(valu("v_lshrrev_b32", vX0, 5, vTID)); post.append(valu("v_add_u32", vX0, sE[6], vX0))
    post.append(valu("v_subrev_u32", vX1, 6, vX0)); post.append(valu("v_min_u32", vX0, vX0, vX1))
    post.append(valu("v_and_b32", vX1, 31, vTID)); post.append(valu("v_lshlrev_b32", vX1, 2, vX1))
    post.append(valu("v_lshl_add_u32", vX0, vX0, 7, vX1))
    post.append(buf_ld(vB, vX0, SRD_B, sB1))
    post += srd(SRD_W2, sP[12:14], 5308416) + srd(SRD_WS, sP2[2:4], 64 << 20)
    post += lane_setup() + dma_voff(vD1, 9216) + dma_voff(vD2, 1152)
    post.append(salu("s_mul_i32", sB2, sFS, 384 * 1152))
    sTP = [S(54 + i) for i in range(6)]; sW2R = [S(64 + i) for i in range(6)]; sCP = [S(70 + i) for i in range(9)]
    post += rot_table(sTP, sE[6], 6, 128, sB1, sT[1])
    post += rot_table(sW2R, sE[6], 6, 64 * 1152, sB2, sT[1])
    if rotC: post += rot_table(sCP, sJ8, 9, 128, None, sT[1])
    post.append(salu("s_mul_i32", sSTB, sFS, SLAB))
    post.append(salu("s_add_u32", sSTB, sSTB, sXB))
    if tlb:
        post.append(valu("v_min_u32", vX0, 1, vTID))
        post.append(valu("v_mul_u32_u24", vX1, 442368 - 4, vX0)); post.append(valu("v_mul_u32_u24", vX2, 147456 - 4, vX0))
        post.append(touch(vX1, SRD_W2, sB2)); post.append(touch(vX2, SRD_WS, sSTB))
    post.append(salu("s_mov_b32", sC1, f32(GK)))
    post.append(valu("v_lshrrev_b32", vX1, 5, vLANE))
    post.append(salu("s_lshl_b32", sT[0], sC2, 7))
    post.append(valu("v_lshl_add_u32", vBI, vX1, 4, sT[0]))
    post.append(valu("v_mul_u32_u24", vX0, 57, vLANE)); post.append(valu("v_lshrrev_b32", vX0, 10, vX0))
    post.append(valu("v_mul_u32_u24", vX1, 18, vX0)); post.append(valu("v_sub_u32", vX1, vLANE, vX1))
    post.append(salu("s_mul_i32", sT[0], sW, 144)); post.append(salu("s_add_u32", sT[0], sT[0], sJ8))
    post.append(valu("v_lshl_add_u32", vX1, vX1, 3, sT[0])); post.append(valu("v_mul_u32_u24", vX1, 9216, vX1))
    post.append(valu("v_lshl_add_u32", vPF[0], vX0, 7, vX1))
    post.append(valu("v_mov_b32", vX2, "0x7ff00000"))
    post.append(I(f"v_cmp_gt_u32 vcc, 54, {vLANE}", VALU, rd=[vLANE], wr=["vcc"]))
    post.append(valu("v_cndmask_b32", vPF[0], vX2, vPF[0], "vcc", rd_extra=["vcc"]))
    post.append(salu("s_mul_i32", sT[0], sJ8, 55296)); post.append(salu("s_mul_i32", sT[1], sW, 13824)); post.append(salu("s_add_u32", sT[0], sT[0], sT[1]))
    post.append(valu("v_lshl_add_u32", vPF[1], vLANE, 7, sT[0]))
    post.append(valu("v_cndmask_b32", vPF[1], vX2, vPF[1], "vcc", rd_extra=["vcc"]))
    post.append(valu("v_add_u32", vPF[2], 6912, vPF[1]))

    M = B.M
    step_start = {}; step_end = {}; huse = {}
    def pair(u, off, pat, acc, bfr, first, cinit):
        a = B.next_a(u, B.tr_std(u, off, pat))
        if first and cinit == "bias":
            m0 = mfma32(acc[16:32], a, bfr[1], acc[0:16]); m1 = mfma32(acc[0:16], a, bfr[0], acc[0:16])
        elif first:
            m0 = mfma32(acc[0:16], a, bfr[0], 0); m1 = mfma32(acc[16:32], a, bfr[1], 0)
        else:
            m0 = mfma32(acc[0:16], a, bfr[0], acc[0:16]); m1 = mfma32(acc[16:32], a, bfr[1], acc[16:32])
        B.add(m0, True); B.add(m1, False, u)
    for s in range(6):
        step_start[s] = len(M)
        for t in range(36):
            hb = t >> 2
            u = B.unit(("w1", s, hb), vD1, SRD_W1, sTP[s], hb * 64 * 9216)
            B.xuse.setdefault(t, len(M))
            pair(u, (t & 3) * 2048, 1, ACC[s % 3], [xfrag(t, 0), xfrag(t, 1)], t == 0, "bias")
        step_end[s] = len(M) - 1
    pacc = {}; order = [0, 3, 4, 1, 2]
    pass_end = {}; pass_start = {}
    groups = [list(range(N1))] + [[cp] for cp in range(N1, 9)]
    for grp in groups:
        for cp in grp: pacc[cp] = ACC[order[cp % 5]]; pass_start[cp] = len(M)
        for kk in range(24):
            for cp in grp:
                u = B.unit(("w2", cp, kk >> 2), vD2, SRD_W2, sW2R[kk >> 2], sCP[cp] if rotC else cp * 128)
                huse.setdefault(kk, len(M))
                pair(u, (kk & 3) * 2048, 2, pacc[cp], [hfrag(kk, 0), hfrag(kk, 1)], kk == 0, "zero")
                pass_end[cp] = len(M) - 1
    bars = list(range(3, step_end[0], BARS))
    g = bars[-1] + BARS
    while g < step_start[5]: bars.append(g); g += BARL
    g = step_start[5] + 11 if g - BARL < step_start[5] + 5 else g
    while g < pass_end[N1 - 1]: bars.append(g); g += BARM
    while g < len(M) - 8: bars.append(g); g += BARL
    sc = B.make_sched(bars, [k * UNIT for k in range(1, 12)])
    sb = sorted(bars)
    P += B.ln_prologue(post, NPER, U3, n0=n0, dma_from=dma_from, maxdma=maxdma)
    P.append(valu("v_lshlrev_b32", vB2[0], 16, vB)); P.append(valu("v_and_b32", vB2[1], sMASK, vB))
    P.append(valu("v_mul_f32", vB2[0], f32(GA), vB2[0])); P.append(valu("v_mul_f32", vB2[1], f32(GA), vB2[1]))
    P.append(valu("v_lshlrev_b32", vX0, 3, vTID))
    bw = ds_wr(vX0, vB2, 0); P.append(bw)
    P += B.first_barrier([bw])
    last_user = B.ln_streams(P)
    pub = lambda it, g: sc.to_publish.append(it)
    h_w = {}; g_items = []; hr_items = []; bias_items = []
    for s in range(6):
        acc = ACC[s % 3]
        b = (s + 1) % 4
        prev = last_user[b]
        ws_ = []
        nxt = step_start[s + 3] - 6 if s + 3 < 6 else 10**9
        pb = [x for x in sb if x <= huse[4 * s] - 4]
        dl = min(nxt, pb[-1] - 3)
        if s + 1 < 6: dl = min(dl, step_end[s + 1] + 24)
        for i in range(2):
            for q in range(2):
                last_m = step_end[s] - (1 - i)
                d2 = dl - 3 * (3 - (2 * i + q))
                for ins in gelu_items(acc, i, q): g_items.append(item(ins, earliest=last_m + 2, deadline=d2 - 1, name=f"g{s}"))
                w = item(ds_wr(vHW, acc[16 * i + 8 * q:16 * i + 8 * q + 4], b * 16384 + i * 2048 + q * 1024), deadline=d2, name=f"hw{s}.{i}.{q}")
                w.cond = lambda g, prev=prev: all(r.pub is not None for r in prev)
                w.on_emit = pub
                ws_.append(w); g_items.append(w)
        h_w[s] = ws_
        rs = []
        for c in range(2):
            for q in range(2):
                kk = 4 * s + 2 * c + q
                for i in range(2):
                    r = item(ds_rd(hfrag(kk, i), vHR, b * 16384 + c * 4096 + i * 2048 + q * 1024),
                             earliest=step_start[5] + 2 * kk + 1, deadline=huse[kk] - 3, name=f"hr{kk}.{i}")
                    r.cond = lambda g, ws_=ws_: all(w.pub is not None for w in ws_)
                    r.on_emit = pub
                    rs.append(r); B.need(huse[kk], [r])
        hr_items += rs
        last_user[b] = rs
        if s + 4 < 6:
            for r in rs: r.deadline = min(r.deadline, step_start[5] + 9 + 20 * s)
    B.release_blocks(last_user)
    for s in range(6):
        acc = ACC[s % 3]
        for j in range(4):
            r = item(ds_rd(acc[4 * j:4 * j + 4], vBI, s * 256 + j * 32), deadline=step_start[s] - 3, name=f"bias{s}")
            if s >= 3: r.cond = lambda g, w=h_w[s - 3]: all(x.gap is not None and x.gap < g for x in w)
            elif s >= 1: r.cond = lambda g: all(x.gap is not None and x.gap < g for x in B.ln_items)
            r.earliest = step_start[s] - 24
            if s == 0:
                r.ins = r.make(); r.gap = -1; P += r.ins
            else:
                bias_items.append(r); B.need(step_start[s], [r])
    sc.add(Stream("bias", bias_items)); sc.add(Stream("gelu", g_items)); sc.add(Stream("hr", hr_items))
    sts = B.y_stream([(pacc[cp], pass_end[cp], sCP[cp] if rotC else cp * 4096) for cp in range(9)], pace=ypace, slack=yslack)
    for cp in range(9):
        if cp >= 5: B.need(pass_start[cp], sts[cp - 5])
        else:
            o = order[cp % 5]
            if o < 3: B.need(pass_start[cp], h_w[max(s for s in range(6) if s % 3 == o)])
    if pf & 1:
        sc.fix(pf1, item(touch(vPF[0], SRD_W1, sB1, 0))); sc.fix(pf1b, item(touch(vPF[0], SRD_W1, sB1, 384)))
    if pf & 2:
        sc.fix(pf2, item(touch(vPF[1], SRD_W2, sB2))); sc.fix(pf2b, item(touch(vPF[2], SRD_W2, sB2)))
    B.blackout = [(g, g + pause) for g in ([pf1, pf1b] if pf & 1 else []) + ([pf2, pf2b] if pf & 2 else [])]
    pro_stamp = stamp()
    for g in (step_end[0], step_end[2], step_end[5], pass_end[N1 - 1], pass_end[5], len(M) - 1):
        for ins in stamp(): sc.fix(g, Item(lambda ins=ins: [ins], PRE, 1))
    body = B.finish(P, "FFN", verbose)
    P += pro_stamp
    return P, body
```

```python
from common import *
import ffn, attn
def mfma16(d, a, b, c):
    return I(f"v_mfma_f32_16x16x32_bf16 {d}, {a}, {b}, {c}", MFMA, rd=[a, b], wr=[d], c=[c] if isreg(c) else [])
def build_k2():
    p = []; a = p.append
    SX, SO, SW, SB = S(4, 4), S(8, 4), S(12, 4), S(16, 4)
    a(raw("s_cmp_ge_u32 s2, 256", SALU)); a(raw("s_cbranch_scc1 L_end2"))
    if Stamps.on: a(I("s_memrealtime s[40:41]", SMEM, wr=[S(40, 2)]))
    a(I("s_load_dwordx2 s[22:23], s[0:1], 80", SMEM, wr=[S(22, 2)]))
    a(I("s_load_dwordx2 s[20:21], s[0:1], 0", SMEM, wr=[S(20, 2)]))
    a(I("s_load_dwordx4 s[24:27], s[0:1], 56", SMEM, wr=[S(24, 4)]))
    a(valu("v_readfirstlane_b32", S(28), V(0)))
    a(valu("v_and_b32", V(1), 63, V(0)))
    a(salu("s_and_b32", S(31), S(2), 7)); a(salu("s_lshl_b32", S(31), S(31), 3)); a(salu("s_lshr_b32", S(32), S(2), 5)); a(salu("s_add_u32", S(31), S(31), S(32)))
    a(salu("s_bfe_u32", S(32), S(2), hex((2 << 16) | 3)))
    a(salu("s_lshr_b32", S(28), S(28), 6))
    a(salu("s_mul_i32", S(32), S(32), 9)); a(salu("s_add_u32", S(32), S(32), S(28)))
    a(salu("s_mul_i32", S(29), S(31), 36)); a(salu("s_add_u32", S(29), S(29), S(32)))
    a(salu("s_lshl_b32", S(30), S(29), 10))
    a(valu("v_lshlrev_b32", V(2), 4, V(1)))
    a(salu("s_mul_i32", S(33), S(31), 32 * 1152)); a(salu("s_lshl_b32", S(34), S(32), 5)); a(salu("s_add_u32", S(33), S(33), S(34)))
    a(salu("s_mul_i32", S(36), S(31), 36864)); a(salu("s_lshl_b32", S(37), S(28), 12)); a(salu("s_add_u32", S(36), S(36), S(37))); a(salu("s_add_u32", S(36), S(36), hex(attn.OOFF)))
    a(salu("s_mul_i32", S(38), S(32), 18432)); a(salu("s_add_u32", S(38), S(38), hex(attn.WOFF)))
    a(salu("s_mov_b32", "m0", S(37)))
    a(valu("v_and_b32", V(3), 31, V(1))); a(valu("v_mul_u32_u24", V(3), 1152, V(3)))
    a(valu("v_lshrrev_b32", V(4), 5, V(1)))
    a(valu("v_lshl_add_u32", V(5), V(4), 3, V(3)))
    a(valu("v_lshl_add_u32", V(6), V(4), 4, V(3)))
    a(valu("v_lshlrev_b32", V(7), 3, V(4)))
    a(wait(lg=0))
    p += srd(SW, S(22, 2), 64 << 20)
    od = []
    for k in range(4):
        d = dma(V(2), SW, S(36), off=1024 * k); a(d); od.append(d)
    AF = [V(88 + 4 * t, 4) for t in range(18)]
    for t in range(18):
        a(buf_ld(AF[t], V(2), SW, S(38), off=1024 * (t & 3)))
        if t & 3 == 3: a(salu("s_add_u32", S(38), S(38), 4096))
    L = [V(40 + 4 * i, 4) for i in range(12)]
    for i in range(12):
        a(buf_ld(L[i], V(2), SW, S(30)))
        if i < 11: a(salu("s_add_u32", S(30), S(30), hex(SLAB)))
    p += srd(SX, S(20, 2), SLAB) + srd(SB, S(24, 2), 1152) + srd(SO, S(26, 2), SLAB)
    X = V(8, 4); B = V(12, 4)
    a(buf_ld(X[0:2], V(5), SX, S(33))); a(buf_ld(X[2:4], V(5), SX, S(33), off=16))
    a(buf_ld(B[0:2], V(7), SB, S(34))); a(buf_ld(B[2:4], V(7), SB, S(34), off=16))
    a(salu("s_mov_b32", S(35), "0xffff0000"))
    a(wait_ops(vm_ops=od)); a(bar())
    Sx = V(160, 8)
    BF = [V(16 + 4 * k, 4) for k in range(6)]
    rd = lambda n: ds_rd(BF[n % 6], V(2), (n & 1) * 18432 + (n >> 1) * 1024)
    for n in range(4): a(rd(n))
    for n in range(36):
        t, nt = n >> 1, n & 1
        a(mfma16(Sx[4 * nt:4 * nt + 4], AF[t], BF[n % 6], Sx[4 * nt:4 * nt + 4] if t else 0))
        if n + 4 < 36: a(rd(n + 4))
    Y = V(16, 8)
    def acc(dst, src, first):
        for j in range(4):
            if first:
                a(valu("v_lshlrev_b32", dst[2 * j], 16, src[j])); a(valu("v_and_b32", dst[2 * j + 1], S(35), src[j]))
            else:
                a(valu("v_lshlrev_b32", V(3), 16, src[j])); a(valu("v_and_b32", src[j], S(35), src[j]))
                a(valu("v_add_f32", dst[2 * j], dst[2 * j], V(3))); a(valu("v_add_f32", dst[2 * j + 1], dst[2 * j + 1], src[j]))
    for i in range(12): acc(Y, L[i], i == 0)
    for r in range(4):
        a(I(f"v_permlane16_swap_b32 {Sx[r]}, {Sx[r+4]}", VALU, rd=[Sx[r], Sx[r + 4]], wr=[Sx[r], Sx[r + 4]], perm=True))
    T = V(24, 8)
    acc(T, B, True)
    a(salu("s_mov_b32", S(39), f32(1.0 / ffn.GA)))
    for j in range(8): a(valu("v_fma_f32", Y[j], Y[j], S(39), T[j]))
    for j in range(8): a(valu("v_mul_f32", T[j], f32(-math.log2(math.e)), Y[j]))
    for j in range(8): a(trans("v_exp_f32", T[j], T[j]))
    for j in range(8): a(valu("v_add_f32", T[j], "1.0", T[j]))
    for j in range(8): a(trans("v_rcp_f32", T[j], T[j]))
    for j in range(8): a(valu("v_mul_f32", Y[j], Y[j], T[j]))
    acc(T, X, True)
    for j in range(8): a(valu("v_fma_f32", Y[j], Y[j], Sx[j], T[j]))
    O = V(32, 4)
    for j in range(4): a(valu("v_cvt_pk_bf16_f32", O[j], Y[2 * j], Y[2 * j + 1]))
    for j in range(2):
        a(I(f"v_permlane32_swap_b32 {O[j]}, {O[j+2]}", VALU, rd=[O[j], O[j + 2]], wr=[O[j], O[j + 2]], perm=True))
    a(buf_st(O, V(6), SO, S(33)))
    if Stamps.on:
        a(wait(vm=0)); a(I("s_memrealtime s[42:43]", SMEM, wr=[S(42, 2)])); a(wait(lg=0))
        a(valu("v_mov_b32", V(8), S(40))); a(valu("v_mov_b32", V(9), S(42))); a(valu("v_mov_b32", V(3), 0))
        a(salu("s_lshl_b32", S(29), S(29), 3)); a(salu("s_add_u32", S(29), S(29), hex(49 << 20)))
        a(raw("s_mov_b64 exec, 1", SALU))
        a(buf_st(V(8, 2), V(3), SW, S(29)))
    return p
```

```python
import sys
sys.path.insert(0, "gen")
from common import *
import ffn

KNAME = "recurrent_scan__linear_attn_block__dense_activation_gelu__prompt_kernel"

def k1_entry():
    p = []; a = p.append
    a(raw("s_cmp_ge_u32 s2, 256", SALU)); a(raw("s_cbranch_scc1 L_end"))
    a(I("s_load_dwordx16 s[64:79], s[0:1], 0", SMEM, wr=[sP]))
    a(I("s_load_dwordx4 s[80:83], s[0:1], 72", SMEM, wr=[sP2]))
    p += stamp() + rstamp(10)
    a(valu("v_readfirstlane_b32", sW, V(0)))
    a(salu("s_and_b32", sT[0], sWG, 7))
    a(salu("s_lshr_b32", sT[1], sWG, 3))
    a(salu("s_and_b32", sJ8, sT[1], 7))
    a(salu("s_and_b32", sRB, sT[0], 1)); a(salu("s_lshl_b32", sRB, sRB, 3)); a(salu("s_add_u32", sRB, sRB, sJ8))
    a(salu("s_lshr_b32", sROLE, sT[1], 3))
    a(salu("s_lshr_b32", sXH, sT[0], 1))
    a(salu("s_lshr_b32", sW, sW, 6))
    a(salu("s_lshr_b32", sR2, sW, 1)); a(salu("s_and_b32", sC2, sW, 1))
    p += entry_lane_setup()
    a(raw(f"s_cmp_eq_u32 {sROLE}, 0", SALU, rd=[sROLE])); a(raw("s_cbranch_scc1 L_attn"))
    return p

def ffn_entry():
    return ffn.ffn_pre() + [wait(lg=0)]

def kd(name, v, acc, sg=102):
    return f""".p2align 6
.amdhsa_kernel {name}
  .amdhsa_next_free_vgpr {v}
  .amdhsa_next_free_sgpr {sg}
  .amdhsa_accum_offset {acc}
  .amdhsa_group_segment_fixed_size 0
  .amdhsa_kernarg_size 88
  .amdhsa_user_sgpr_count 2
  .amdhsa_user_sgpr_kernarg_segment_ptr 1
  .amdhsa_system_sgpr_workgroup_id_x 1
.end_amdhsa_kernel"""

def build(path, **kw):
    import k2, attn
    st = {}
    Stamps.on = kw.get("stamps", False); Stamps.n = 0; Cfg.pcn = 0
    head = k1_entry()
    P, body = ffn.build_ffn(**kw.get("ffn", {}))
    drop = kw.get("drop", ())
    if drop: body = [i for i in body if i.k not in drop]
    body = body + stamp_dump()
    f = finalize(head + ffn_entry() + P + body, st)
    print("ffn finalize:", st, "est total", estimate(f), "est body", estimate(finalize(body)), "ninstr", len(f))
    st2 = {}
    ap = attn.build_attn(**kw.get("attn", {}))
    af = finalize(head + ap, st2)[len(finalize(head)):]
    print("attn finalize:", st2, "est", estimate(af), "ninstr", len(af))
    k2p = finalize(k2.build_k2())
    hdr = open("recurrent_scan__linear_attn_block__dense_activation_gelu__prompt.s.ref").read().split("; Override launch")[0]
    out = [hdr.rstrip(),
           f"; @launch kernel={KNAME} grid=(256,1,1) block=(256,1,1) lds=163840",
           f"; @launch kernel=fin_kernel grid=(256,1,1) block=(576,1,1) lds=36864",
           '.amdgcn_target "amdgcn-amd-amdhsa--gfx950"', ".text",
           f".globl {KNAME}", ".p2align 8", f".type {KNAME},@function", f"{KNAME}:",
           text(f), "L_end:", "  s_endpgm", ".p2align 6", "L_attn:", text(af), "  s_endpgm",
           ".globl fin_kernel", ".p2align 8", ".type fin_kernel,@function", "fin_kernel:", text(k2p), "L_end2:", "  s_endpgm", "L_codeend:",
           '.section .rodata,"a"', kd(KNAME, 512, 256), kd("fin_kernel", 168, 168, 48)]
    open(path, "w").write("\n".join(out) + "\n")

if __name__ == "__main__":
    if len(sys.argv) > 2 and sys.argv[2] == "r": Stamps.op = "s_memrealtime"
    build(sys.argv[1] if len(sys.argv) > 1 else "recurrent_scan__linear_attn_block__dense_activation_gelu__prompt.s", stamps=len(sys.argv) > 2)
```

```python
from common import *

LOG2E = math.log2(math.e)
OOFF = 32 << 20
WOFF = 36 << 20
GOFF = 40 << 20
vQ1 = [V(2), V(3)]; vQ4 = [V(4), V(5)]
vQ5 = [V(6), V(7)]
vDQ = [V(16), V(17), V(18)]; vDS = [V(19), V(15)]
vCSW = V(13); vCSR = V(14); vZ0 = V(20); vPFW = V(21)
def axf(T, i): return A(32 * ((T >> 2) & 1) + 4 * (2 * (T & 3) + i), 4)
def ACCt(tile, i): return V(64 + 32 * tile + 16 * i, 16) if tile < 5 else A(64 + 32 * (tile - 5) + 16 * i, 16)
CSD = {t: A(128 + 4 * t, 4) for t in range(7)}
ONES = A(156, 4); XEXT = [A(160, 4), A(164, 4)]
RSTD = V(224, 32)
TOFF = {0: 0, 1: 288, 2: 72, 3: 288 + 72}
PITCH = 704
SLOT = 12288
R0B = 8192

def poll(name, off, target):
    v = vX0; s = sT[0]; c = sT[1]
    return [wait(lg=0), valu("v_mov_b32", vX1, 0), salu("s_mov_b32", c, 0),
            raw(f"s_cmp_lg_u32 {sW}, 0", SALU, rd=[sW]), raw(f"s_cbranch_scc1 {name}_x"), label(name),
            I(f"buffer_load_dword {v}, {vX1}, {SRD_DBG}, {sE[0]} offen offset:{off} sc1", OTHER, rd=[vX1]),
            salu("s_add_u32", c, c, 1), raw(f"s_cmp_ge_u32 {c}, 0x200000", SALU, rd=[c]), raw("s_waitcnt vmcnt(0)"),
            raw(f"s_cbranch_scc1 {name}_x"),
            valu("v_readfirstlane_b32", s, v), nop(3),
            raw(f"s_cmp_ge_u32 {s}, {target}", SALU, rd=[s]), raw(f"s_cbranch_scc1 {name}_x"),
            raw("s_sleep 4"), raw(f"s_branch {name}"), label(name + "_x")]
def signal(off, va, vb):
    return [valu("v_lshlrev_b32", va, 12, vTID), valu("v_mov_b32", vb, 1),
            I(f"buffer_atomic_add {vb}, {va}, {SRD_DBG}, {sE[0]} offen offset:{off}", VMST, rd=[vb, va, SRD_DBG, sE[0]])]


def phi_pair(dst, a0, a1, r0, r1, t, raw=None):
    x0, x1, e0, e1 = t[0], t[1], t[2], t[3]
    if a0.p == "a": o = [valu("v_accvgpr_read_b32", x0, a0), valu("v_accvgpr_read_b32", x1, a1), valu("v_mul_f32", x0, x0, r0), valu("v_mul_f32", x1, x1, r1)]
    else: o = [valu("v_mul_f32", x0, a0, r0), valu("v_mul_f32", x1, a1, r1)]
    if raw is not None: o.append(valu("v_cvt_pk_bf16_f32", raw, x0, x1))
    return o + [valu("v_mul_f32", e0, f32(LOG2E), x0), valu("v_mul_f32", e1, f32(LOG2E), x1),
            trans("v_exp_f32_e64", e0, e0, extra="clamp"), trans("v_exp_f32_e64", e1, e1, extra="clamp"),
            valu("v_max_f32", x0, 0, x0), valu("v_max_f32", x1, 0, x1),
            valu("v_add_f32", x0, x0, e0), valu("v_add_f32", x1, x1, e1),
            valu("v_add_f32", x0, f32(1e-6), x0), valu("v_add_f32", x1, f32(1e-6), x1), valu("v_cvt_pk_bf16_f32", dst, x0, x1)]
def cvt_pair(dst, a0, a1, r0, r1, t, raw=None):
    return [valu("v_mul_f32", t[0], a0, r0), valu("v_mul_f32", t[1], a1, r1), valu("v_cvt_pk_bf16_f32", dst, t[0], t[1])]

def build_attn(D=8, BAR=30, BARB=8, dma_pace=2, npre=3, npre2=5, X1=64, X2=32, pfw=200, pause=30, sigdelay=30, GP=4, tlb=True, ctouch=True, drop=(), noq=False, xt=0, verbose=True):
    sHG = sXH
    sM3 = sE[1]
    B = Builder(D, dma_pace, m0b=sM3)
    sXO = [S(0), S(1), S(20), S(21), S(22), S(23), S(60), S(61), S(62)]; sKO = [S(63), S(29)] + [S(70 + i) for i in range(7)]
    l = vLANE
    P = []; a = P.append
    a(salu("s_mul_i32", sB1, sHG, 288)); a(salu("s_mul_i32", sM3, sW, 3072))
    P += rot_table(sXO[:2], sJ8, 9, 128, sXB, sT[1]) + rot_table(sKO[:1], sJ8, 9, 64 * 3456, sB1, sT[1])
    a(valu("v_mov_b32", vT[5], OOB))
    for p_ in range(3):
        a(valu("v_add_u32", vX0, 64 * p_, vLANE))
        a(valu("v_mul_u32_u24", vX1, 1490, vX0)); a(valu("v_lshrrev_b32", vX1, 16, vX1))
        a(valu("v_mul_u32_u24", vX2, 44, vX1)); a(valu("v_sub_u32", vX2, vX0, vX2))
        a(valu("v_mul_u32_u24", vX3, 57, vX2)); a(valu("v_lshrrev_b32", vX3, 10, vX3))
        a(valu("v_mul_u32_u24", vT[0], 1152 - 288, vX3))
        a(valu("v_lshl_add_u32", vT[0], vX2, 4, vT[0])); a(valu("v_add_u32", vT[0], 1152, vT[0]))
        a(valu("v_mul_u32_u24", vT[2], 144, vX2)); a(valu("v_subrev_u32", vT[2], 36 * 144 - 128, vT[2]))
        a(I(f"v_cmp_gt_u32 vcc, 36, {vX2}", VALU, rd=[vX2], wr=["vcc"]))
        a(valu("v_cndmask_b32", vT[0], vT[2], vT[0], "vcc", rd_extra=["vcc"]))
        a(valu("v_mul_u32_u24", vT[1], 3456, vX1))
        a(salu("s_mul_i32", sT[0], sW, 4 * 3456)); a(salu("s_add_u32", sT[0], sT[0], hex(4096 - 1024 * p_)))
        a(valu("v_add3_u32", vT[0], vT[0], vT[1], sT[0]))
        a(I(f"v_cmp_gt_u32 vcc, {36 if noq else 38}, {vX2}", VALU, rd=[vX2], wr=["vcc"]))
        a(valu("v_cndmask_b32", vT[0], vT[5], vT[0], "vcc", rd_extra=["vcc"]))
        a(I(f"v_cmp_gt_u32 vcc, 4, {vX1}", VALU, rd=[vX1], wr=["vcc"]))
        a(valu("v_cndmask_b32", vDQ[p_], vT[5], vT[0], "vcc", rd_extra=["vcc"]))
    a(wait(lg=0))
    P += srd(SRD_X, sP[0:2], SLAB) + srd(SRD_W1, sP[2:4], 1990656 + 4096)
    a(salu("s_sub_u32", SRD_W1[0], SRD_W1[0], 4096)); a(raw(f"s_subb_u32 {SRD_W1[1]}, {SRD_W1[1]}, 0", SALU, rd=[SRD_W1[1]], wr=[SRD_W1[1]]))
    if xt: P += x_touch()
    post = []; a = post.append
    post += srd(SRD_W2, sP[4:6], 663552) + srd(SRD_WS, sP2[2:4], 64 << 20) + srd(SRD_DBG, sP2[0:2], 256)
    post += rot_table(sXO, sJ8, 9, 128, sXB, sT[1]) + rot_table(sKO, sJ8, 9, 64 * 3456, sB1, sT[1])
    if ctouch: post += code_touch()
    post2 = []; a = post2.append
    post2 += [salu("s_mov_b32", sONE, "0x3f803f80"), salu("s_mov_b32", sMASK, "0xffff0000")]
    post2 += x_read_setup(False)
    a(valu("v_bfe_u32", vT[3], l, 2, 2)); a(valu("v_mul_u32_u24", vX0, PITCH, vT[3]))
    a(valu("v_lshrrev_b32", vT[4], 5, l)); a(valu("v_mul_u32_u24", vX1, 6144, vT[4])); a(valu("v_add_u32", vX0, vX0, vX1))
    a(valu("v_and_b32", vX1, 3, l)); a(valu("v_bfe_u32", vX2, l, 4, 1))
    a(valu("v_lshl_add_u32", vX3, vX2, 2, vX1))
    a(salu("s_mul_i32", sT[0], sC2, 144))
    a(valu("v_lshl_add_u32", vQ1[0], vX3, 3, vX0)); a(valu("v_add_u32", vQ1[0], sT[0], vQ1[0]))
    a(valu("v_and_b32", vT[0], 1, l)); a(valu("v_bfe_u32", vT[1], l, 1, 1))
    a(valu("v_mul_u32_u24", vT[2], 288, vT[0])); a(valu("v_mul_u32_u24", vT[1], 72, vT[1]))
    a(salu("s_add_u32", sT[0], sT[0], 64)); a(valu("v_add3_u32", vT[2], vT[2], vT[1], sT[0]))
    a(salu("s_lshl_b32", sT[0], sC2, 4)); a(salu("s_add_u32", sT[0], sT[0], 576))
    a(valu("v_lshl_add_u32", vT[0], vT[0], 3, sT[0]))
    a(I(f"v_cmp_eq_u32 s[58:59], 1, {vX2}", VALU, rd=[vX2], wr=[S(58, 2)]))
    a(valu("v_cndmask_b32", vT[2], vT[2], vT[0], S(58, 2)))
    a(valu("v_add_u32", vQ4[0], vX0, vT[2]))
    a(valu("v_add_u32", vQ1[1], hex(65536), vQ1[0])); a(valu("v_add_u32", vQ4[1], hex(65536), vQ4[0]))
    a(valu("v_lshl_add_u32", vX0, vT[4], 3, vT[3])); a(valu("v_lshlrev_b32", vX0, 8, vX0)); a(valu("v_lshl_add_u32", vX0, vX3, 3, vX0))
    a(salu("s_lshl_b32", sT[0], sC2, 1)); a(valu("v_xor_b32", vX1, sT[0], vT[3]))
    a(valu("v_lshl_add_u32", vQ5[0], vX1, 6, vX0)); a(valu("v_add_u32", vQ5[0], hex(R0B + 4 * SLOT), vQ5[0])); a(valu("v_xor_b32", vQ5[1], 64, vQ5[0]))
    post2 += ones_sel(V(224, 4))
    for j in range(4): a(valu("v_accvgpr_write_b32", ONES[j], V(224 + j)))
    post3 = []; a = post3.append
    a(valu("v_lshrrev_b32", vX0, 4, l)); a(valu("v_bfe_u32", vX1, l, 2, 2)); a(valu("v_xor_b32", vX1, vX1, vX0))
    a(valu("v_lshrrev_b32", vX2, 1, vX1)); a(valu("v_mul_u32_u24", vX2, 144, vX2))
    a(valu("v_and_b32", vX1, 1, vX1)); a(valu("v_lshl_add_u32", vX2, vX1, 6, vX2))
    a(valu("v_and_b32", vX1, 3, l)); a(valu("v_lshl_add_u32", vX2, vX1, 4, vX2))
    a(valu("v_mul_u32_u24", vX0, 3456, vX0))
    a(salu("s_mul_i32", sT[0], sW, 8 * 3456)); a(salu("s_add_u32", sT[0], sT[0], 4096))
    a(valu("v_add3_u32", vDS[0], vX0, vX2, sT[0])); a(valu("v_add_u32", vDS[1], 4 * 3456 - 1024, vDS[0]))
    a(salu("s_lshl_b32", sE[0], sHG, 4))
    a(salu("s_mul_i32", sE[2], sHG, 98304)); a(salu("s_add_u32", sE[2], sE[2], hex(GOFF)))
    a(salu("s_mul_i32", sB2, sHG, 144 * 1152))
    a(valu("v_mov_b32", vZ0, 0))
    a(raw(f"s_cmp_ge_u32 {sRB}, 9", SALU, rd=[sRB])); a(salu("s_cselect_b32", sT[0], 9, 0)); a(salu("s_sub_u32", S(78), sRB, sT[0]))
    a(salu("s_lshl_b32", sT[0], S(78), 7)); a(salu("s_add_u32", sB2, sB2, sT[0]))
    a(valu("v_min_u32", vX0, 35, l)); a(salu("s_mul_i32", sT[1], sW, 36)); a(valu("v_add_u32", vX0, sT[1], vX0)); a(valu("v_mul_u32_u24", vPFW, 1152, vX0))
    if tlb:
        a(valu("v_min_u32", vX0, 1, vTID)); a(valu("v_mul_u32_u24", vX1, 147456 - 4, vX0))
        a(salu("s_add_u32", sT[0], sXB, hex(OOFF))); a(touch(vX1, SRD_WS, sT[0]))
        a(salu("s_mov_b32", sT[1], hex(WOFF))); a(touch(vZ0, SRD_WS, sT[1]))
        a(salu("s_mov_b32", sT[2], hex(GOFF + (1 << 20)))); a(touch(vZ0, SRD_WS, sT[2]))
        a(touch(vZ0, SRD_DBG, 0))
    a(salu("s_mul_i32", sT[0], sW, 896)); a(salu("s_add_u32", sT[0], sT[0], T_CS))
    a(valu("v_lshl_add_u32", vX0, l, 2, sT[0]))
    a(I(f"v_cmp_gt_u32 vcc, 16, {l}", VALU, rd=[l], wr=["vcc"])); a(valu("v_cndmask_b32", vCSW, vT[5], vX0, "vcc", rd_extra=["vcc"]))
    a(I(f"v_cmp_gt_u32 vcc, 32, {l}", VALU, rd=[l], wr=["vcc"])); a(valu("v_cndmask_b32", vCSR, vT[5], vX0, "vcc", rd_extra=["vcc"]))

    M = B.M
    WEX = V(30, 4)
    cs_last = {}
    for t in range(36):
        u = B.unit(("wkv", t), vDQ, SRD_W1, sKO[t >> 2], (t & 3) * 16 * 3456)
        B.xuse[t] = len(M)
        for tile in (1, 4, 0, 2, 3):
            def mk(av, h, u=u, tile=tile):
                ad = u.addr + h * 3072 + (TOFF[tile] if tile != 4 else 0)
                return ds_tr(av[2 * h:2 * h + 2], (vQ1 if tile != 4 else vQ4)[ad >> 16], ad & 0xffff)
            av = B.next_a(u, mk)
            cs_last[tile] = len(M); B.add(mfma16(CSD[tile], ONES, av, CSD[tile] if t else 0), True, u)
            for i in range(2):
                acc = ACCt(tile, i)
                B.add(mfma32(acc, axf(t, i), av, acc if t else 0), False, u)
    S2 = len(M)
    PK = {"4A": V(192, 16), "4B": V(112, 16), 0: V(64, 16), 1: V(96, 16), 2: V(128, 16), 3: V(160, 16)}
    PD = {"01": A(168, 16), "04": A(184, 16), "41": A(200, 16), "44": V(80, 16), "23": A(216, 16), "24": A(232, 16), "43": V(208, 16)}
    def prod(name, ta, tb):
        return [mfma32(PD[name], PK[ta][4 * k:4 * k + 4], PK[tb][4 * k:4 * k + 4], PD[name] if k else 0) for k in range(4)]
    m1 = prod("41", "4A", 1) + prod("01", 0, 1) + prod("04", 0, "4B") + prod("44", "4A", "4B")
    m2 = prod("23", 2, 3) + prod("24", 2, "4B") + prod("43", "4A", 3)
    pos = {}; ext_at = {}
    for tile in (1, 4, 0, 2, 3):
        ext_at[tile] = len(M)
        for i in range(2): B.add(mfma32(ACCt(tile, i), XEXT[i], WEX, ACCt(tile, i)))
    pool2 = LDSAlloc([BLK, BLK + 8192])
    Q0B = R0B + 4 * SLOT
    for t in range(36):
        if t == X1 // 4:
            pos["m1"] = len(M)
            for m in m1: B.add(m)
        if t == X1 // 4 + X2 // 4:
            pos["m2"] = len(M)
            for m in m2: B.add(m)
            pos["m2e"] = len(M) - 1
        u = B.unit(("wq", t >> 1), vDS, SRD_W1, sKO[t >> 2], ((t >> 1) & 1) * 32 * 3456, sM0B); u.pool = pool2
        B.xuse[36 + t] = len(M)
        for tile in (5, 6):
            def mk(av, h, u=u, tile=tile, t=t):
                return ds_tr(av[2 * h:2 * h + 2], vQ5[tile - 5], u.addr - Q0B + (t & 1) * 4096 + h * 1024)
            av = B.next_a(u, mk)
            cs_last[tile] = len(M); B.add(mfma16(CSD[tile], ONES, av, CSD[tile] if t else 0), True, u)
            for i in range(2):
                acc = ACCt(tile, i)
                B.add(mfma32(acc, axf(36 + t, i), av, acc if t else 0), False, u)
    bars = list(range(BAR - D - 1, S2 - 4, BAR)) + list(range(S2 + 1, len(M), BARB))
    CB = [V(224, 16), V(224, 16)]; S4 = V(240, 4); Q4 = V(244, 4)
    B.x_units(sXO, axf, 2, CB, nblk=3, blk0=1)
    B.dma_pace = lambda g: 1 if g < 60 else dma_pace
    sc = B.make_sched(bars, [R0B + SLOT * k for k in range(7)])
    u1 = [u for u in B.units if u.name[0] == "wkv"]
    B.retire = lambda addr, g: all(u.addr is not None for u in u1)
    given = set()
    def carve(g):
        if all(u.addr is not None for u in u1):
            for x in list(B.ring.free): B.ring.free.remove(x); B.retired[x] = g
        for j in range(5):
            lo = Q0B + 8192 * j; hi = lo + 8192
            need_ = [R0B + SLOT * k for k in range(7) if R0B + SLOT * k < hi and R0B + SLOT * (k + 1) > lo]
            if j not in given and all(x in B.retired for x in need_): given.add(j); pool2.put(lo)
    sc.on_bar.append(carve)
    for _ in range(npre): P += B.next_dma()
    P += post
    for _ in range(2): P += B.next_dma()
    P += post2
    for _ in range(npre2 - npre - 2): P += B.next_dma()
    P += stamp()
    P += B.first_barrier()
    pub = lambda it, g: sc.to_publish.append(it)
    seq = lambda ins, e, d0, d1, name: [Item(lambda x=x: [x], VAL, x.cost, earliest=e, deadline=d0 + ((d1 - d0) * k) // max(1, len(ins)), name=name) for k, x in enumerate(ins)]
    P3 = seq(post3, 2, 20, 100, "p3")
    B.stats_batches(CB, S4, Q4, [B.xuse[4 * U] + 8 for U in range(9)])
    sc.fix(pfw, item(touch(vPFW, SRD_W2, sB2, dst=A(255)))); B.blackout = [(pfw, pfw + pause)]
    e0 = B.xuse[32] + 9
    BX = V(248, 4); rho = V(252)
    sf = stats_finish(S4, Q4, BX, rho, None, [vT[2], vT[3]])
    sf += [valu("v_lshlrev_b32", vT[2], 4, vTID), valu("v_and_b32", vT[3], 31, vLANE), salu("s_lshl_b32", sT[0], sW, 7), valu("v_lshl_add_u32", vT[3], vT[3], 2, sT[0])]
    SF = seq(sf, e0, e0 + 2, e0 + 10, "sf")
    wr = [item(ds_wr(vT[2], BX, T_BX), deadline=e0 + 11, name="bxw"), item(ds_wr(vT[3], rho, T_RHO), deadline=e0 + 11, name="rhow")]
    for w in wr: w.on_emit = pub
    ad2 = [salu("s_lshl_b32", sT[0], sC2, 10), valu("v_subrev_u32", vT[2], sT[0], vT[2]),
           valu("v_lshrrev_b32", vT[3], 5, vLANE), salu("s_lshl_b32", sT[0], sR2, 8), valu("v_lshl_add_u32", vT[3], vT[3], 4, sT[0]),
           valu("v_mov_b32", WEX[2], 0), valu("v_mov_b32", WEX[3], 0)]
    AD2 = seq(ad2, 0, e0 + 12, e0 + 13, "ad2")
    rd = [item(ds_rd(XEXT[i], vT[2], T_BX + 1024 * i), deadline=S2 - 8, name="bxr") for i in range(2)]
    rd += [item(ds_rd(RSTD[4 * j:4 * j + 4], vT[3], T_RHO + 32 * j), deadline=S2 - 6, name="rsr") for j in range(8)]
    rd[0].cond = lambda g: all(w.pub is not None for w in wr)
    B.need(S2, rd)
    sc.add(Stream("setup", P3 + SF + wr + AD2 + rd))
    def cs_w(tile):
        d = CSD[tile]
        return I(f"ds_write2_b32 {vCSW}, {d[0]}, {d[1]} offset0:{32*tile} offset1:{32*tile+16}", LDSW, rd=[vCSW, d[0], d[1]], cost=2)
    def wex(c): return [valu("v_cvt_pk_bf16_f32", WEX[0], c, c), valu("v_and_b32", WEX[1], sMASK, WEX[0]), valu("v_sub_f32", c, c, WEX[1]), valu("v_cvt_pk_bf16_f32", WEX[1], c, 0)]
    CSV = {1: vT[0], 4: vT[1], 0: vT[4], 2: vX1, 3: vX2}
    CS1 = []; CS2 = []
    for tile in (1, 4, 0, 2, 3):
        e = cs_last[tile] + 3
        CS1.append(item(cs_w(tile), earliest=e, deadline=e, name="csw"))
        CS1.append(item(ds_rd(CSV[tile], vCSR, 128 * tile), earliest=e + 1, deadline=e + 1, name="csr"))
        BL = [item(x, earliest=ext_at[tile] - 1, deadline=ext_at[tile] - 1, name="wex") for x in wex(CSV[tile])]
        BL[0].cond = lambda g, r=CS1[-1]: r.gap is not None
        CS2 += BL; B.need(ext_at[tile], BL)
    sc.add(Stream("cs1", CS1)); sc.add(Stream("cs2", CS2))
    tmp = [V(34), V(35), V(38), V(39)]; tmp2 = [V(40), V(41), V(42), V(8)]
    def ep_tile(name, tile, fn, raw=None):
        o = []
        for i in range(2):
            for j in range(0, 8, 2):
                ac = ACCt(tile, i); rs = RSTD[16 * i:16 * i + 16]
                x = fn(PK[name][8 * i + j], ac[2 * j], ac[2 * j + 1], rs[2 * j], rs[2 * j + 1], tmp, raw and raw[8 * i + j])
                y = fn(PK[name][8 * i + j + 1], ac[2 * j + 2], ac[2 * j + 3], rs[2 * j + 2], rs[2 * j + 3], tmp2, raw and raw[8 * i + j + 1])
                for p_, q_ in zip(x, y): o += [p_, q_]
        return o
    e1 = [valu("v_mov_b32", vX3, "0x3f803f80")] + ep_tile(1, 1, cvt_pair) + ep_tile("4A", 4, phi_pair, PK["4B"])
    e1 += [valu("v_cndmask_b32", PK["4B"][j], PK["4B"][j], vX3, S(58, 2)) for j in range(16)]
    e1 += ep_tile(0, 0, phi_pair)
    e2 = ep_tile(2, 2, phi_pair) + ep_tile(3, 3, cvt_pair)
    def spread(ins, g0, g1, name):
        tot = sum(i.cost for i in ins); c = 0; out = []
        for i in ins:
            c += i.cost
            out.append(item(i, earliest=g0, deadline=g0 + int((g1 - g0) * c / tot), name=name))
        return out
    E1 = spread(e1, S2 + 9, pos["m1"] + 2, "e1")
    E2 = spread(e2, pos["m1"] + 3, pos["m2"] - 2, "e2")
    n4 = 1 + 48 + 16 * 14
    B.need(pos["m1"], [E1[n4 - 1]]); B.need(pos["m1"] + 4, E1[-1:]); B.need(pos["m2"], E2[-1:])
    ad = []; b = ad.append
    vK0, vK1, vK2, vK3, vK4, vK5 = [V(144 + i) for i in range(6)]
    n_ = V(34); g_ = V(35); x2 = V(38); e_ = V(39); j_ = V(40); t3 = V(41)
    b(valu("v_and_b32", n_, 31, vLANE)); b(valu("v_lshrrev_b32", g_, 5, vLANE))
    b(salu("s_mul_i32", sT[0], sR2, 23680)); b(salu("s_mul_i32", sT[1], sC2, 11840)); b(salu("s_add_u32", sT[0], sT[0], sT[1]))
    b(salu("s_mul_i32", sT[2], sW, 5920))
    b(salu("s_mul_i32", sT[3], sR2, 96 * 176)); b(salu("s_mul_i32", sT[4], sC2, 48 * 176 + 72)); b(salu("s_add_u32", sT[3], sT[3], sT[4]))
    b(salu("s_mul_i32", sE[3], sW, 1536)); b(salu("s_add_u32", sE[2], sE[3], sE[2]))
    b(salu("s_mul_i32", sE[3], sRB, 6144)); b(salu("s_add_u32", sE[3], sE[3], sE[2]))
    b(valu("v_mul_u32_u24", vK0, 160, n_)); b(valu("v_lshl_add_u32", vK0, g_, 4, vK0)); b(valu("v_add_u32", vK0, sT[0], vK0))
    b(valu("v_mov_b32", vX3, OOB))
    b(valu("v_add_u32", vK2, 20 * 160, vK0))
    b(valu("v_subrev_u32", x2, 12, n_)); b(I(f"v_cmp_gt_u32 vcc, 5, {x2}", VALU, rd=[x2], wr=["vcc"]))
    b(valu("v_add_u32", vK1, 28 * 160, vK0))
    b(valu("v_subrev_u32", x2, 4, n_))
    b(valu("v_cndmask_b32", vK2, vX3, vK2, "vcc", rd_extra=["vcc"]))
    b(I(f"v_cmp_gt_u32 vcc, 4, {x2}", VALU, rd=[x2], wr=["vcc"]))
    b(valu("v_cndmask_b32", vK1, vX3, vK1, "vcc", rd_extra=["vcc"]))
    b(I(f"v_cmp_eq_u32 vcc, 16, {n_}", VALU, rd=[n_], wr=["vcc"]))
    b(valu("v_cndmask_b32", vK1, vK1, vK2, "vcc", rd_extra=["vcc"]))
    b(I(f"v_cmp_gt_u32 vcc, 32, {vLANE}", VALU, rd=[vLANE], wr=["vcc"]))
    b(valu("v_cndmask_b32", vK3, vX3, vK0, "vcc", rd_extra=["vcc"]))
    b(valu("v_cndmask_b32", vK4, vX3, vK1, "vcc", rd_extra=["vcc"]))
    b(valu("v_cndmask_b32", vK5, vX3, vK2, "vcc", rd_extra=["vcc"]))
    vS = [[V(150 + 2 * p_ + hp) for hp in range(2)] for p_ in range(3)]
    vAMa = [V(26 + p_) for p_ in range(3)]; vAMz = V(29); vG = [V(20), V(21)]
    for p_ in range(3):
        dp_ = x2
        b(valu("v_add_u32", e_, 64 * p_, vLANE))
        b(valu("v_mul_u32_u24", j_, 57, e_)); b(valu("v_lshrrev_b32", j_, 9, j_))
        b(valu("v_mul_u32_u24", dp_, 9, j_)); b(valu("v_sub_u32", dp_, e_, dp_))
        b(valu("v_mul_u32_u24", vS[p_][0], 160, j_)); b(valu("v_lshl_add_u32", vS[p_][0], dp_, 3, vS[p_][0])); b(valu("v_add_u32", vS[p_][0], sT[2], vS[p_][0]))
        b(valu("v_add_u32", vS[p_][1], 18 * 160 + 72, vS[p_][0]))
        b(valu("v_mul_u32_u24", vAMa[p_], 176, j_)); b(valu("v_lshl_add_u32", vAMa[p_], dp_, 2, vAMa[p_])); b(valu("v_add_u32", vAMa[p_], sT[3], vAMa[p_]))
        if p_ == 2:
            b(valu("v_add_u32", t3, 18 * 160, vS[p_][0]))
            b(I(f"v_cmp_eq_u32 vcc, 18, {j_}", VALU, rd=[j_], wr=["vcc"]))
            b(valu("v_cndmask_b32", vS[p_][0], vS[p_][0], t3, "vcc", rd_extra=["vcc"]))
            b(valu("v_add_u32", t3, 4 * 176, vAMa[p_]))
            b(valu("v_cndmask_b32", vAMz, vX3, t3, "vcc", rd_extra=["vcc"]))
            b(I(f"v_cmp_gt_u32 vcc, 19, {j_}", VALU, rd=[j_], wr=["vcc"]))
            b(valu("v_lshlrev_b32", vG[0], 4, vLANE)); b(valu("v_lshlrev_b32", vG[1], 3, vLANE))
            b(valu("v_cndmask_b32", vAMa[p_], vX3, vAMa[p_], "vcc", rd_extra=["vcc"]))
            b(valu("v_cndmask_b32", vS[p_][0], vLANE, vS[p_][0], "vcc", rd_extra=["vcc"]))
            b(valu("v_cndmask_b32", vS[p_][1], vLANE, vS[p_][1], "vcc", rd_extra=["vcc"]))
            b(valu("v_and_b32", vS[p_][0], -8, vS[p_][0])); b(valu("v_and_b32", vS[p_][1], -8, vS[p_][1]))
    AD = seq(ad, pos["m2"] - 1, pos["m2"], pos["m2"] + 6, "ad")
    KVT = R0B
    kw = []
    for j in range(4):
        kw.append(ds_wr(vK0, PD["01"][4 * j:4 * j + 4], KVT + 32 * j)); kw.append(ds_wr(vK1, PD["04"][4 * j:4 * j + 4], KVT + 32 * j))
    kw.append(ds_wr(vK3, PD["41"][0:4], KVT + 128)); kw.append(ds_wr(vK4, PD["44"][0:4], KVT + 128)); kw.append(ds_wr(vK5, PD["44"][4:8], KVT + 5920 + 128))
    nk1 = len(kw)
    for j in range(4): kw.append(ds_wr(vK0, PD["23"][4 * j:4 * j + 4], KVT + 5920 + 32 * j))
    for j in range(4): kw.append(ds_wr(vK2, PD["24"][4 * j:4 * j + 4], KVT + 5920 + 32 * j))
    kw.append(ds_wr(vK3, PD["43"][4:8], KVT + 5920 + 128))
    KW = []
    for k, ins in enumerate(kw):
        e = pos["m2"] + 7 if k < nk1 else pos["m2"] + 5 + 4 * min(2, (k - nk1) // 4)
        it = item(ins, earliest=e, deadline=max(e, pos["m2"] + 7 + (7 * k) // len(kw)), name=f"kw{k}"); it.on_emit = pub; KW.append(it)
    KW[0].cond = lambda g: all(R0B + SLOT * k in B.retired for k in range(4))
    bk = pos["m2e"] + 5
    sc.bars.add(bk)
    R0 = V(64, 12); R1 = V(96, 12)
    CP = []
    for hp in range(2):
        for p_ in range(3):
            k = 2 * (3 * hp + p_)
            CP.append(item(ds_rd(R0[k:k + 2], vS[p_][hp], KVT), deadline=bk + 1, name="cr")); CP.append(item(ds_rd(R1[k:k + 2], vS[p_][hp], KVT + 23680), deadline=bk + 1, name="cr"))
    for it in CP: it.on_emit = pub
    CR = list(CP)
    CP[0].cond = lambda g: all(w.pub is not None for w in KW)
    for k in range(12): CP.append(item(valu("v_add_f32", R0[k], R0[k], R1[k]), earliest=bk + 3, deadline=bk + 4, name="cadd"))
    for k in range(6): CP.append(item(valu("v_cvt_pk_bf16_f32", R0[k], R0[2 * k], R0[2 * k + 1]), deadline=bk + 4, name="ccvt"))
    ats = [buf_st(R0[0:4], vG[0], SRD_WS, sE[3], aux="sc1"), buf_st(R0[4:6], vG[1], SRD_WS, sE[3], off=1024, aux="sc1")]
    for ins in ats: CP.append(item(ins, deadline=bk + 5, name="kvst"))
    for ins in stamp(): sc.fix(S2 - 1, Item(lambda ins=ins: [ins], PRE, 1))
    for ins in stamp(): CP.append(Item(lambda ins=ins: [ins], PRE, 1, deadline=bk + 10, name="st"))
    gw = min([x for x in sorted(sc.bars) if x >= bk + 9 + sigdelay]) - 1
    wv = item(wait_ops(vm_ops=ats), earliest=gw, deadline=gw, name="atwait"); CP.append(wv)
    sg = signal(128, V(156), V(157))
    CP.append(item(sg[0], earliest=gw, deadline=gw, name="sg")); CP.append(item(sg[1], earliest=gw, deadline=gw, name="sg"))
    CP.append(item(sg[2], earliest=gw + 1, deadline=gw + 1, name="sig"))
    AM = R0B; OIM = R0B; PQ = BLK + 16384
    Z = V(176, 4)
    ZF = [item(valu("v_lshlrev_b32", V(158), 4, vTID), earliest=gw + 2, name="zf")] + [item(valu("v_mov_b32", Z[j], 0), name="zf") for j in range(4)]
    zw = [item(ds_wr(V(158), Z, AM + 4096 * k), name="zf") for k in range(9)]
    zw[0].cond = lambda g: all(r.pub is not None for r in CR)
    tl = []; a = tl.append
    vD2b = [V(16), V(17)]
    vPW = V(180); vPW4 = V(181); vPR = V(182); vAR = V(183); vOW = V(184); vOW2 = V(186); vWR = V(170); vWS = V(171); vWS2 = V(172); vOP = V(173)
    tl += dma_voff(vD2b, 1152)
    a(I(f"v_cmp_gt_u32 vcc, 64, {vTID}", VALU, rd=[vTID], wr=["vcc"]))
    a(valu("v_cndmask_b32", V(174), vX3, vD2b[0], "vcc", rd_extra=["vcc"])); a(valu("v_cndmask_b32", V(175), vX3, vD2b[1], "vcc", rd_extra=["vcc"]))
    n_ = vX0; g_ = vX1
    a(valu("v_and_b32", n_, 31, vLANE)); a(valu("v_lshrrev_b32", g_, 5, vLANE))
    a(salu("s_mul_i32", sT[0], sW, 80 * 136)); a(salu("s_add_u32", sT[0], sT[0], hex(PQ)))
    a(valu("v_mul_u32_u24", vPW, 136, n_)); a(valu("v_lshl_add_u32", vPW, g_, 3, vPW)); a(valu("v_add_u32", vPW, sT[0], vPW))
    a(valu("v_add_u32", vPW4, 48 * 136, vPW))
    a(valu("v_cndmask_b32", vPW4, vX3, vPW4, S(58, 2)))
    a(valu("v_bfe_u32", vX2, vLANE, 2, 2)); a(valu("v_lshl_add_u32", vX2, g_, 3, vX2)); a(valu("v_mul_u32_u24", vPR, 136, vX2))
    a(valu("v_and_b32", vX2, 3, vLANE)); a(valu("v_lshl_add_u32", vPR, vX2, 3, vPR))
    a(valu("v_bfe_u32", vX2, vLANE, 4, 1)); a(valu("v_lshl_add_u32", vPR, vX2, 5, vPR)); a(valu("v_add_u32", vPR, sT[0], vPR))
    a(salu("s_mul_i32", sT[0], sC2, 96 * 176))
    a(valu("v_mul_u32_u24", vAR, 176, n_)); a(valu("v_lshl_add_u32", vAR, g_, 4, vAR)); a(valu("v_add_u32", vAR, sT[0], vAR))
    a(salu("s_mul_i32", sT[0], sR2, 64 * 304))
    a(valu("v_mul_u32_u24", vX2, 304, n_)); a(valu("v_add_u32", vX2, sT[0], vX2))
    a(salu("s_mul_i32", sT[0], sC2, 144)); a(valu("v_lshl_add_u32", vOW, g_, 3, vX2)); a(valu("v_add_u32", vOW, sT[0], vOW))
    a(I(f"v_cmp_gt_u32 vcc, 32, {vLANE}", VALU, rd=[vLANE], wr=["vcc"]))
    a(valu("v_lshlrev_b32", vWS, 4, vLANE))
    a(valu("v_cndmask_b32", vOW2, vX3, vOW, "vcc", rd_extra=["vcc"]))
    a(valu("v_cndmask_b32", vWS2, vX3, vWS, "vcc", rd_extra=["vcc"]))
    for i in range(2): a(valu("v_add_u32", V(168 + i), hex(OIM + i * 32 * 304), vOW))
    WL = 56 * 1024
    a(valu("v_bfe_u32", vX0, vLANE, 2, 2)); a(valu("v_lshrrev_b32", vX1, 4, vLANE))
    a(valu("v_lshl_add_u32", vX2, vX1, 3, vX0)); a(valu("v_lshlrev_b32", vWR, 7, vX2))
    a(valu("v_bfe_u32", vX2, vLANE, 3, 1)); a(valu("v_xor_b32", vX2, sR2, vX2)); a(valu("v_lshl_add_u32", vWR, vX2, 6, vWR))
    a(valu("v_and_b32", vX2, 1, vLANE)); a(valu("v_lshl_add_u32", vWR, vX2, 4, vWR))
    a(valu("v_bfe_u32", vX2, vLANE, 1, 1)); a(valu("v_lshl_add_u32", vWR, vX2, 3, vWR))
    a(salu("s_lshl_b32", sT[0], sC2, 5)); a(salu("s_add_u32", sT[0], sT[0], hex(WL))); a(valu("v_add_u32", vWR, sT[0], vWR))
    a(valu("v_and_b32", vX0, 15, vLANE)); a(valu("v_mul_u32_u24", vX0, 304, vX0)); a(valu("v_lshl_add_u32", vX0, vX1, 4, vX0))
    a(salu("s_mul_i32", sT[0], sW, 32 * 304)); a(valu("v_add_u32", vOP, sT[0], vX0))
    sWO = [S(64), S(65)]; sOO = [S(66), S(67), S(68), S(69)]
    a(salu("s_lshl_b32", sT[0], S(78), 2)); a(salu("s_add_u32", sT[0], sT[0], sW)); a(salu("s_mul_i32", sT[0], sT[0], 18432))
    a(salu("s_mul_i32", sT[2], sHG, 18 * 256)); a(salu("s_add_u32", sT[0], sT[0], sT[2])); a(salu("s_add_u32", sWO[0], sT[0], hex(WOFF))); a(salu("s_add_u32", sWO[1], sWO[0], 4096))
    a(salu("s_lshl_b32", sT[0], sRB, 2)); a(salu("s_add_u32", sT[0], sT[0], sW)); a(salu("s_mul_i32", sT[0], sT[0], 36864))
    a(salu("s_add_u32", sT[0], sT[0], sT[2])); a(salu("s_add_u32", sOO[0], sT[0], hex(OOFF)))
    a(salu("s_add_u32", sOO[1], sOO[0], 4096)); a(salu("s_add_u32", sOO[2], sOO[0], 18432)); a(salu("s_add_u32", sOO[3], sOO[0], 18432 + 4096))
    TL = seq(tl, gw + 2, len(M) - 30, len(M) - 4, "tl")
    sc.add(Stream("ep", E1 + E2 + AD + KW + CP + ZF + zw + TL))
    body = B.finish(P, "ATTN-G1", verbose)
    assert wv.gap == gw and CP[-1].gap == gw + 1, (wv.gap, gw)
    E = []; a = E.append
    E += stamp()
    for tile in (5, 6): a(cs_w(tile))
    for tile in (5, 6): a(ds_rd(vT[tile - 5], vCSR, 128 * tile))
    a(wait(lg=0)); a(bar())
    wod = []
    for k in range(3):
        a(salu("s_add_u32", "m0", sM0B, hex(WL + k * 8192))); a(salu("s_add_u32", sSO[k & 1], sB2, hex(k * 64 * 1152)))
        for h in range(2):
            d = dma(vD2b[h] if k < 2 else V(174 + h), SRD_W2, sSO[k & 1], off=1024 * h); a(d); wod.append(d)
    for tile in (5, 6):
        E += wex(vT[tile - 5])
        for i in range(2): a(mfma32(ACCt(tile, i), XEXT[i], WEX, ACCt(tile, i)))
    def pq_writes(src, addr, doff):
        return [ds_wr(addr, src[8 * i + 2 * j:8 * i + 2 * j + 2], doff * 136 + 64 * i + 16 * j) for i in range(2) for j in range(4)]
    E += pq_writes(PK["4A"], vPW4, 0)
    PK[5] = V(112, 16); PK[6] = V(128, 16)
    def qpart(tile, doff):
        et = ep_tile(tile, tile, phi_pair); pw = pq_writes(PK[tile], vPW, doff)
        n = len(et) // 4
        return [et[k * n:(k + 1) * n] + pw[2 * k:2 * k + 2] for k in range(4)]
    parts = qpart(5, 0) + qpart(6, 32)
    for k in range(GP): E += parts[k]
    a(wait_ops(vm_ops=wod))
    E += stamp()
    E += poll("L_pd", 128, 16)
    a(bar())
    E += stamp()
    GLr = [V(64 + 6 * k, 6) for k in range(8)] + [V(144 + 6 * k, 6) for k in range(4)] + [V(188 + 6 * k, 6) for k in range(4)]
    a(salu("s_mov_b32", sT[0], sRB))
    gls = []
    for k in range(16):
        r = GLr[k]; so = sSO[k & 1]
        gls.append([salu("s_mul_i32", so, sT[0], 6144), salu("s_add_u32", so, so, sE[2]),
                    buf_ld(r[0:4], vG[0], SRD_WS, so, aux="sc1"), buf_ld(r[4:6], vG[1], SRD_WS, so, off=1024, aux="sc1"),
                    salu("s_add_u32", sT[0], sT[0], 1), salu("s_and_b32", sT[0], sT[0], 15)])
    rest = parts[GP:]
    per = -(-16 // max(1, min(3, len(rest))))
    gi = 0
    WF = A(0, 20)
    for m in range(5):
        for h in range(2): a(ds_tr(WF[4 * m + 2 * h:4 * m + 2 * h + 2], vWR, m * 4096 + h * 512))
    for pt in rest + [[]]:
        for g_i in gls[gi:gi + per]: E += g_i
        gi += per
        E += pt
    for g_i in gls[gi:]: E += g_i
    for m in range(4): a(buf_st(WF[4 * m:4 * m + 4], vWS, SRD_WS, sWO[0], off=1024 * m, aux=Cfg.staux))
    a(buf_st(WF[16:20], vWS2, SRD_WS, sWO[1], aux=Cfg.staux))
    QF = lambda t, i: A(24 + 4 * (2 * t + i), 4)
    for t in range(5):
        for i in range(2):
            for h in range(2): a(ds_tr(QF(t, i)[2 * h:2 * h + 2], vPR, (16 * t + 4 * h) * 136 + 64 * i))
    R0 = V(212, 12)
    a(salu("s_mov_b32", sT[2], "0x00003f80")); a(salu("s_mov_b32", sT[3], "0x3f800000"))
    for k, r in enumerate(GLr):
        for j in range(6):
            a(valu("v_dot2_f32_bf16", R0[2 * j], r[j], sT[2], R0[2 * j] if k else 0))
            a(valu("v_dot2_f32_bf16", R0[2 * j + 1], r[j], sT[3], R0[2 * j + 1] if k else 0))
    for k in range(0, 12, 2): a(valu("v_cvt_pk_bf16_f32", R0[k], R0[k], R0[k + 1]))
    for hp in range(2):
        for p_ in range(3):
            k = 2 * (3 * hp + p_)
            a(ds_wr(vAMa[p_], R0[k], AM + hp * (24 * 176 + 36)))
            if p_ == 2: a(ds_wr(vAMz, R0[k], AM + hp * (24 * 176 + 36)))
    a(wait(lg=0)); a(bar())
    AF = lambda tau, k: V(116 + 4 * (3 * tau + k), 4)
    for tau in range(3):
        for k in range(3): a(ds_rd(AF(tau, k), vAR, AM + tau * 32 * 176 + (tau + k) * 32))
    NV = [V(64, 48), None]
    ND1 = [V(152, 16), V(188, 16), V(44, 16)]
    def nvr(i, r): return NV[0][r] if i == 0 else ND1[r // 16][r % 16]
    mm = {0: [], 1: []}
    for i in range(2):
        for tau in range(3):
            d = NV[0][16 * tau:16 * tau + 16] if i == 0 else ND1[tau]
            for k in range(3): mm[i].append(mfma32(d, AF(tau, k), QF(tau + k, i), d if k else 0))
    def oep(i):
        o = []; w = []
        for hl in range(4): o.append(valu("v_add_f32", nvr(i, 12 * hl + 10), f32(1e-6), nvr(i, 12 * hl + 10)))
        for hl in range(4): o.append(trans("v_rcp_f32", nvr(i, 12 * hl + 10), nvr(i, 12 * hl + 10)))
        for hl in range(4):
            for r in range(10): o.append(valu("v_mul_f32", nvr(i, 12 * hl + r), nvr(i, 12 * hl + r), nvr(i, 12 * hl + 10)))
            for r in range(5): o.append(valu("v_cvt_pk_bf16_f32", nvr(i, 12 * hl + r), nvr(i, 12 * hl + 2 * r), nvr(i, 12 * hl + 2 * r + 1)))
        va = V(168 + i)
        for hl in range(4):
            for grp in range(2):
                o0 = (36 * hl + 16 * grp) // 4
                d0, d1 = nvr(i, 12 * hl + 2 * grp), nvr(i, 12 * hl + 2 * grp + 1)
                w.append(I(f"ds_write2_b32 {va}, {d0}, {d1} offset0:{o0} offset1:{o0+1}", LDSW, rd=[va, d0, d1], cost=3))
            w.append(ds_wr(vOW2, nvr(i, 12 * hl + 4), OIM + i * 32 * 304 + 36 * hl + 32))
        return o, w
    E += mm[0]
    a(wait(lg=0)); a(bar())
    o0_, w0_ = oep(0); o1_, w1_ = oep(1)
    E += mm[1][:2]
    k = 0
    for m in mm[1][2:]:
        a(m); E += o0_[k:k + 10]; k += 10
    E += o0_[k:] + w0_ + o1_ + w1_
    a(wait(lg=0))
    a(bar())
    OP = V(64, 40)
    for nt in range(2):
        for m in range(5): a(ds_rd(OP[20 * nt + 4 * m:20 * nt + 4 * m + 4], vOP, OIM + nt * 16 * 304 + m * 64))
    E += stamp()
    for nt in range(2):
        for m in range(4): a(buf_st(OP[20 * nt + 4 * m:20 * nt + 4 * m + 4], vWS, SRD_WS, sOO[2 * nt], off=1024 * m, aux=Cfg.staux))
        a(buf_st(OP[20 * nt + 16:20 * nt + 20], vWS2, SRD_WS, sOO[2 * nt + 1], aux=Cfg.staux))
    tail = stamp()
    if drop: body = [i for i in body if not (i.k in drop or ('m16' in drop and '16x16' in i.t) or ('dot' in drop and 'v_dot2' in i.t) or ('xdma' in drop and i.k == DMA and 's[4:7]' in i.t) or ('wdma' in drop and i.k == DMA and 's[8:11]' in i.t))]
    return P + body + E + tail + stamp_dump()
```

```python
from fw import *
from sched import *
import struct, math
def f32(x): return "0x%08x" % struct.unpack("<I", struct.pack("<f", x))[0]

SLAB = 2359296
sKA = S(0, 2); sWG = S(2)
SRD_X = S(4, 4); SRD_W1 = S(8, 4); SRD_W2 = S(12, 4); SRD_WS = S(16, 4); SRD_B = S(20, 4); SRD_DBG = S(24, 4)
sRB = S(28); sFS = S(29); sW = S(30); sR2 = S(31); sC2 = S(32); sJ8 = S(33)
sT = [S(34 + i) for i in range(6)]
sXB = S(40); sB1 = S(41); sB2 = S(42)
sM0B = S(43)
sSO = [S(44), S(45)]
sSTB = S(46); sST = [S(47), S(48)]
sC1 = S(49); sONE = S(50); sMASK = S(51); sROLE = S(52); sXH = S(53)
sE = [S(54 + i) for i in range(10)]
sP = S(64, 16); sP2 = S(80, 4)
def rot_table(dsts, rot, n, mul, base, tmp):
    p = [salu("s_mov_b32", tmp, rot)]
    for i in range(len(dsts)):
        p.append(salu("s_mul_i32", dsts[i], tmp, hex(mul)))
        if base is not None: p.append(salu("s_add_u32", dsts[i], dsts[i], base))
        if i + 1 < len(dsts):
            p.append(salu("s_add_u32", tmp, tmp, 1))
            p.append(raw(f"s_cmp_ge_u32 {tmp}, {n}", SALU, rd=[tmp]))
            p.append(salu("s_cselect_b32", tmp, 0, tmp))
    return p
UNIT = 8192

def srd(dst, ptr, nbytes):
    return [salu("s_mov_b32", dst[0], ptr[0]), salu("s_mov_b32", dst[1], ptr[1]),
            salu("s_mov_b32", dst[2], hex(nbytes)), salu("s_mov_b32", dst[3], "0x00020000")]

STAMP_REGS = [100, 84, 86, 88, 90, 92, 94, 96, 80, 82, 98, 4]
class Cfg:
    pcn = 0
    kname = 'recurrent_scan__linear_attn_block__dense_activation_gelu__prompt_kernel'
    staux = 'sc1'
class Stamps:
    on = False
    op = 's_memtime'
    n = 0
def stamp():
    if not Stamps.on: return []
    r = STAMP_REGS[Stamps.n]; Stamps.n += 1
    return [I(f"{Stamps.op} s[{r}:{r+1}]", SMEM, wr=[S(r, 2)])]
def rstamp(k):
    if not Stamps.on: return []
    r = STAMP_REGS[k]
    return [I(f"s_memrealtime s[{r}:{r+1}]", SMEM, wr=[S(r, 2)])]
def stamp_dump():
    if not Stamps.on: return []
    Stamps.n = 9
    p = [wait(vm=0, lg=0)] + stamp() + rstamp(11) + [wait(lg=0)]
    for k in range(12):
        p.append(valu("v_mov_b32", V(64 + k), S(STAMP_REGS[k])))
    t = sT[0]
    p.append(salu("s_lshl_b32", t, S(2), 2)); p.append(salu("s_add_u32", t, t, sW)); p.append(salu("s_lshl_b32", t, t, 6))
    p.append(salu("s_add_u32", t, t, hex(48 << 20)))
    p.append(valu("v_mov_b32", V(63), 0))
    p.append(raw("s_mov_b64 exec, 1", SALU))
    for k in range(0, 12, 4):
        p.append(buf_st(V(64 + k, 4), V(63), SRD_WS, t, off=4 * k))
    Stamps.n = 1
    return p

vTID = V(0); vLANE = V(1)
vX0 = V(8)
vXR = [V(9 + i) for i in range(4)]
vXD = [V(22 + i) for i in range(4)]
vXO = [V(26 + i) for i in range(4)]
vT = [V(34 + i) for i in range(6)]
vX1 = V(41); vX2 = V(42); vX3 = V(43)
NA = 5
vA = [V(44 + 4 * i, 4) for i in range(NA)]
vDUM = V(40)
BLK = 96 * 1024
OOB = "0x7ff00000"
sM4 = S(3)
T_BX = 0
T_RHO = 4096
T_CS = 4608

def entry_lane_setup():
    p = []; a = p.append
    a(valu("v_and_b32", vLANE, 63, vTID))
    a(valu("v_and_b32", vX0, 7, vTID))
    a(valu("v_bfe_u32", vX1, vTID, 3, 3))
    a(valu("v_lshrrev_b32", vX3, 6, vTID))
    a(valu("v_lshl_add_u32", vX2, vX3, 5, vX1))
    a(valu("v_mul_u32_u24", vX2, 1152, vX2))
    a(valu("v_bfe_u32", vX1, vTID, 4, 2))
    a(valu("v_xor_b32", vX0, vX0, vX1))
    a(valu("v_lshl_add_u32", vXD[0], vX0, 4, vX2))
    a(valu("v_xor_b32", vX0, 4, vX0))
    a(valu("v_lshl_add_u32", vXD[1], vX0, 4, vX2))
    a(valu("v_add_u32", vXD[1], 9216 - 1024, vXD[1]))
    a(valu("v_add_u32", vXD[2], 2 * (9216 - 1024), vXD[0]))
    a(valu("v_add_u32", vXD[3], 2 * (9216 - 1024), vXD[1]))
    a(salu("s_mul_i32", sXB, sRB, 147456))
    a(salu("s_lshl_b32", sM4, sW, 12))
    a(salu("s_lshl_b32", sM0B, sW, 11))
    return p

def x_read_setup(swap):
    p = []; a = p.append
    l = vLANE
    a(valu("v_and_b32", vX0, 31, l)); a(valu("v_lshlrev_b32", vX0, 7, vX0))
    a(salu("s_lshl_b32", sT[0], sR2, 13)); a(salu("s_add_u32", sT[0], sT[0], hex(BLK)))
    a(valu("v_add_u32", vX0, sT[0], vX0))
    a(valu("v_bfe_u32", vX1, l, 1, 3)); a(valu("v_lshrrev_b32", vX2, 5, l)); a(valu("v_xor_b32", vX1, vX1, vX2))
    if swap:
        a(salu("s_lshl_b32", sT[1], sR2, 1)); a(valu("v_xor_b32", vX1, sT[1], vX1))
    a(salu("s_lshl_b32", sT[0], sC2, 12))
    for tt in range(4):
        a(valu("v_xor_b32", vX2, 2 * tt, vX1))
        a(valu("v_lshl_add_u32", vXR[tt], vX2, 4, vX0))
        a(valu("v_add_u32", vXO[tt], sT[0], vXR[tt]))
    return p

def tr_base(dst_g8, dst_g4):
    p = []; a = p.append
    l = vLANE
    a(valu("v_and_b32", vX0, 3, l)); a(valu("v_lshlrev_b32", vX0, 3, vX0))
    a(valu("v_bfe_u32", vX1, l, 4, 1)); a(valu("v_lshl_add_u32", vX0, vX1, 5, vX0))
    a(valu("v_bfe_u32", vX1, l, 2, 2)); a(valu("v_lshl_add_u32", vX0, vX1, 7, vX0))
    a(valu("v_bfe_u32", vX1, l, 3, 1)); a(valu("v_xor_b32", vX1, sC2, vX1)); a(valu("v_lshl_add_u32", vX0, vX1, 6, vX0))
    a(valu("v_lshrrev_b32", vX2, 5, l))
    if dst_g8 is not None: a(valu("v_lshl_add_u32", dst_g8, vX2, 10, vX0))
    if dst_g4 is not None: a(valu("v_lshl_add_u32", dst_g4, vX2, 9, vX0))
    return p

def dma_voff(dst, stride):
    p = []; a = p.append
    a(valu("v_bfe_u32", vX2, vTID, 3, 3))
    a(valu("v_lshrrev_b32", vX1, 6, vTID))
    a(valu("v_lshl_add_u32", vX2, vX1, 4, vX2))
    a(valu("v_mul_u32_u24", vX2, stride, vX2))
    a(valu("v_bfe_u32", vX1, vTID, 4, 1))
    a(valu("v_lshlrev_b32", vX1, 2, vX1))
    a(valu("v_and_b32", vX0, 7, vTID))
    a(valu("v_xor_b32", vX0, vX0, vX1))
    a(valu("v_lshl_add_u32", dst[0], vX0, 4, vX2))
    a(valu("v_add_u32", dst[1], hex(8 * stride - 1024), dst[0]))
    return p

def touch(voff, srd_, soff, off=0, dst=None):
    i = buf_ld(dst or vDUM, voff, srd_, soff, off=off); i.wr = []
    return i

def ones_sel(dst):
    p = [raw("s_mov_b32 vcc_lo, 0x00020001", SALU), raw("s_mov_b32 vcc_hi, 0x00020001", SALU), valu("v_mov_b32", vX0, "0x3f803f80")]
    for j in range(4): p.append(I(f"v_cndmask_b32 {dst[j]}, 0, {vX0}, vcc", VALU, rd=[vX0], wr=[dst[j]]))
    return p

def stats_finish(S4, Q4, BX, rho, scale, t):
    p = []; a = p.append
    a(valu("v_add_f32", S4[0], S4[0], S4[1])); a(valu("v_add_f32", Q4[0], Q4[0], Q4[1]))
    a(valu("v_add_f32", S4[2], S4[2], S4[3])); a(valu("v_add_f32", Q4[2], Q4[2], Q4[3]))
    a(valu("v_add_f32", S4[0], S4[0], S4[2])); a(valu("v_add_f32", Q4[0], Q4[0], Q4[2]))
    a(valu("v_mov_b32", S4[1], S4[0])); a(valu("v_mov_b32", Q4[1], Q4[0]))
    for r in (S4, Q4): a(I(f"v_permlane32_swap_b32 {r[0]}, {r[1]}", VALU, rd=[r[0], r[1]], wr=[r[0], r[1]], perm=True))
    a(valu("v_add_f32", S4[0], S4[0], S4[1])); a(valu("v_add_f32", Q4[0], Q4[0], Q4[1]))
    s, q = S4[0], Q4[0]
    a(valu("v_mul_f32", s, f32(-1.0 / 576), s))
    a(valu("v_mul_f32", q, f32(1.0 / 576), q))
    a(I(f"v_fma_f32 {q}, -{s}, {s}, {q}", VALU, rd=[s, q], wr=[q]))
    a(valu("v_max_f32", q, 0, q)); a(valu("v_add_f32", q, f32(1e-5), q))
    a(trans("v_rsq_f32", rho, q))
    a(valu("v_cvt_pk_bf16_f32", t[0], s, s)); a(valu("v_and_b32", t[0], sMASK, t[0]))
    a(valu("v_mul_f32", q, q, rho))
    a(valu("v_sub_f32", t[1], s, t[0]))
    a(valu("v_cvt_pk_bf16_f32", BX[0], t[0], t[1]))
    a(valu("v_cvt_pk_bf16_f32", BX[1], t[0], q))
    a(valu("v_and_b32", t[0], sMASK, BX[1])); a(valu("v_sub_f32", t[1], q, t[0]))
    a(valu("v_cvt_pk_bf16_f32", BX[2], t[1], 0)); a(valu("v_mov_b32", BX[3], 0))
    if scale is not None: a(valu("v_mul_f32", rho, f32(scale), rho))
    return p

class Unit:
    def __init__(self, name, voff, srd_, sbase, const, m0b=None, fixed=None):
        self.m0b = m0b; self.fixed = fixed; self.cond = None; self.pool = None
        self.name, self.voff, self.srd, self.sbase, self.const = name, voff, srd_, sbase, const
        self.addr = None; self.first_read = 10**9; self.last_mfma = -1; self.dma_item = None; self.readers = []

class Builder:
    def __init__(self, D=6, dma_pace=3, m0b=None):
        self.m0b = m0b or sM0B
        self.M = []; self.afr = []; self.units = []; self.umap = {}
        self.D = D; self.dma_pace = dma_pace
        self.needs = {}; self.xuse = {}; self.fixed_reads = []
        self.xbias = 0; self.xb0 = 4; self.nfrag = 0; self.blackout = []; self.retire = None; self.retired = {}
    def unit(self, key, *args, **kw):
        if key not in self.umap:
            self.umap[key] = Unit(key, *args, **kw); self.units.append(self.umap[key])
        return self.umap[key]
    def next_a(self, unit, mk_reads):
        a = vA[self.nfrag % NA]; self.nfrag += 1
        self.afr.append((unit, mk_reads, a, len(self.M)))
        return a
    def add(self, m, new_a=False, unit=None):
        if new_a: m.tag = "newA"
        if unit is not None: unit.last_mfma = len(self.M)
        self.M.append(m)
    def need(self, idx, its): self.needs.setdefault(idx, []).extend(its)
    def xread(self, unit, gap, ins, name):
        def mk(u=unit, ins=ins):
            assert u.dma_item.pub is not None, (u.name, name, self.sc.gap)
            return [ins]
        it = Item(mk, MEM, 1, name=name); it.on_emit = lambda it, g: self.sc.to_publish.append(it)
        unit.first_read = min(unit.first_read, gap); unit.readers.append(it)
        self.fixed_reads.append((gap, it))
        return it
    def make_sched(self, bars, ring_units):
        sc = self.sc = Sched(self.M); sc.bars = set(bars)
        self.pro_reads = []
        for g, it in self.fixed_reads:
            if g < 0: self.pro_reads.append(it)
            else: sc.fix(g, it)
        for f, (u, mk, a, idx) in enumerate(self.afr):
            for h in range(2):
                def mk2(u=u, mk=mk, a=a, h=h):
                    assert u.addr is not None and u.dma_item.pub is not None, (u.name, sc.gap)
                    return [mk(a, h)]
                g = idx - self.D + h
                it = Item(mk2, MEM, 1, name=f"A{f}.{h}")
                u.first_read = min(u.first_read, g)
                if g < 0: self.pro_reads.append(it)
                else: sc.fix(g, it)
        self.units.sort(key=lambda u: u.first_read + (self.xbias if (u.name[0] == 'x' and u.name[1] >= self.xb0) else 0))
        ring = self.ring = LDSAlloc(ring_units); live = []
        def on_bar(g):
            for u in list(live):
                if u.last_mfma <= g:
                    live.remove(u)
                    if u.pool is not None: u.pool.put(u.addr)
                    elif self.retire is not None and self.retire(u.addr, g): self.retired[u.addr] = g
                    else: ring.put(u.addr)
        sc.on_bar.append(on_bar)
        sb = sorted(sc.bars)
        def unit_items(u, n):
            so = sSO[n & 1]
            i1 = item(salu("s_add_u32", so, u.sbase, u.const if isreg(u.const) else hex(u.const)), name=f"so{u.name}")
            def mk_m0(u=u):
                if u.fixed is not None: u.addr = u.fixed
                else: u.addr = (u.pool or ring).get(); live.append(u)
                return [salu("s_add_u32", "m0", u.m0b or self.m0b, hex(u.addr))]
            i2 = Item(mk_m0, PRE, 1, cond=(lambda g, u=u: u.cond(g) if u.cond else (u.fixed is not None or (u.pool or ring).avail())), name=f"m0{u.name}")
            its = [i1, i2]
            pb = [b for b in sb if b <= u.first_read]
            dl = (pb[-1] if pb else -1) - 12
            i2.deadline = i1.deadline = dl - len(u.voff)
            for k, vo in enumerate(u.voff):
                d = dma(vo, u.srd, so, off=1024 * k)
                i3 = Item(lambda d=d: [d], MEM, 2.0, name=f"dma{u.name}.{k}", deadline=dl - len(u.voff) + 1 + k)
                i3.cond = lambda g, i2=i2, i3=i3: i2.gap is not None and i2.gap < g and (g >= i3.deadline or not any(a <= g < b for a, b in self.blackout))
                its.append(i3)
            u.dma_item = its[-1]
            return its
        self.allu = [unit_items(u, n) for n, u in enumerate(self.units)]
        self.npro = 0
        return sc
    def next_dma(self):
        if self.npro >= len(self.allu): return []
        its = self.allu[self.npro]
        if not its[1].cond(-1): return []
        self.npro += 1
        o = []
        for it in its:
            it.ins = it.make(); it.gap = -1; o += it.ins
        return o
    def first_barrier(self, extra_lg=()):
        sc = self.sc
        fb = min(sc.bars); vm0 = []
        for u in self.units:
            if u.first_read < fb:
                assert u.dma_item.gap is not None, u.name
                vm0 += u.dma_item.ins; u.dma_item.pub = -1
        sc.dma_need = sorted([(u.first_read, u.dma_item) for u in self.units if u.dma_item.pub is None], key=lambda x: x[0])
        sc.add(Stream("dma", [it for its in self.allu[self.npro:] for it in its], pace=self.dma_pace, prio=True))
        return [wait_ops(vm_ops=vm0, lg_ops=list(extra_lg)), bar()]
    def x_units(self, xso, xf, rounds, copybuf, lead=5, nblk=4, blk0=0):
        xs = []; self.copy_reads = {}
        for U in range(9 * rounds):
            u = self.unit(("x", U), vXD, SRD_X, xso[U % 9], 0, m0b=sM4, fixed=BLK + (blk0 + U % nblk) * 16384)
            if U >= nblk: u.cond = lambda g, prev=xs[U - nblk]: all(r.pub is not None for r in prev.readers)
            for tt in range(4):
                for i in range(2):
                    r = self.xread(u, self.xuse[4 * U + tt] - lead + i, ds_rd(xf(4 * U + tt, i), vXR[tt], (blk0 + U % nblk) * 16384 + i * 4096), f"xr{U}.{tt}.{i}")
                    self.need(self.xuse[4 * U + tt], [r])
            if U < 9:
                self.copy_reads[U] = [self.xread(u, self.xuse[4 * U] + tt, ds_rd(copybuf[U & 1][4 * tt:4 * tt + 4], vXO[tt], (blk0 + U % nblk) * 16384), f"xc{U}.{tt}") for tt in range(4)]
            xs.append(u)
        return xs
    def stats_batches(self, copybuf, S4, Q4, gaps):
        for U in range(9):
            ins = []
            for k in range(16):
                r = copybuf[U & 1][k]; f = U == 0 and k < 4
                ins.append(valu("v_dot2_f32_bf16", S4[k & 3], r, sONE, 0 if f else S4[k & 3]))
                ins.append(valu("v_dot2_f32_bf16", Q4[k & 3], r, r, 0 if f else Q4[k & 3]))
            it = Item(lambda ins=ins: ins, LAST, 0, name=f"dots{U}")
            self.sc.fix(gaps[U], it)
    def release_blocks(self, last_user):
        pend = dict(last_user)
        def chk(g):
            for b, rs in list(pend.items()):
                if all(r.pub is not None for r in rs):
                    del pend[b]
                    for k in range(2): self.ring.put(BLK + b * 16384 + k * UNIT)
        self.sc.on_bar.append(chk)
    def y_stream(self, passes, vSTO, pace=3, slack=40):
        y_items = []; res = []
        for n, (acc, end, off) in enumerate(passes):
            st = sST[n & 1]; dl = end + slack
            if isreg(off):
                y_items.append(item(salu("s_lshl_b32", st, off, 5), earliest=end - 6, deadline=dl, name="yso"))
                y_items.append(item(salu("s_add_u32", st, st, sSTB), deadline=dl, name="yso"))
            else: y_items.append(item(salu("s_add_u32", st, sSTB, hex(off)), earliest=end - 4, deadline=dl, name="yso"))
            sts = []
            for i in range(2):
                for h in range(2):
                    b = 16 * i + 8 * h
                    for j in range(4):
                        y_items.append(item(valu("v_cvt_pk_bf16_f32", acc[b + j], acc[b + 2 * j], acc[b + 2 * j + 1]),
                                            earliest=end + 2, deadline=dl, name=f"ycvt{n}"))
                    s_ = item(buf_st(acc[b:b + 4], vSTO[i], SRD_WS, st, off=h * 1024, aux=Cfg.staux), deadline=dl, name=f"yst{n}")
                    s_.cost = 4
                    y_items.append(s_); sts.append(s_)
            res.append(sts)
        self.sc.add(Stream("y", y_items, pace=pace))
        return res
    def finish(self, P, name, verbose=True):
        for it in self.pro_reads:
            it.ins = it.make(); it.gap = -1; P += it.ins
            if it.on_emit: it.on_emit(it, -1)
        body = self.sc.run()
        for idx, its in self.needs.items():
            for it in its:
                assert it.gap is not None and it.gap < idx, f"need {it.name} before mfma {idx}, got {it.gap}"
        if verbose: print(f"{name}: mfma={len(self.M)} bars={len(self.sc.bars)} overflow_slots={self.sc.overflow:.0f} late={len(self.sc.late)}", self.sc.late[:4])
        return body

def code_touch():
    pc = S(82, 2)
    p = [raw("s_getpc_b64 s[82:83]", SALU, wr=[pc]), label("L_pc%d" % Cfg.pcn),
         raw("s_sub_u32 s82, s82, L_pc%d-%s" % (Cfg.pcn, Cfg.kname), SALU, rd=[pc], wr=[pc]), raw("s_subb_u32 s83, s83, 0", SALU, rd=[pc], wr=[pc]),
         salu("s_lshr_b32", sT[0], sWG, 3), salu("s_lshl_b32", sT[0], sT[0], 2), salu("s_add_u32", sT[0], sT[0], sW), salu("s_mul_i32", sT[0], sT[0], 6),
         valu("v_min_u32", vX0, 5, vLANE), valu("v_add_u32", vX0, sT[0], vX0), valu("v_lshlrev_b32", vX0, 7, vX0),
         I("v_min_u32 %s, L_codeend-%s-4, %s" % (vX0, Cfg.kname, vX0), VALU, rd=[vX0], wr=[vX0]),
         I(f"global_load_dword {vDUM}, {vX0}, s[82:83]", VMLD, rd=[vX0, pc])]
    Cfg.pcn += 1
    return p

def x_touch_addr():
    p = []; a = p.append
    a(salu("s_mul_i32", sT[2], sROLE, 288)); a(salu("s_mul_i32", sT[3], sW, 72)); a(salu("s_add_u32", sT[2], sT[2], sT[3]))
    a(valu("v_add_u32", V(44), sT[2], vLANE)); a(valu("v_lshlrev_b32", V(44), 7, V(44)))
    a(valu("v_min_u32", V(45), 7, vLANE)); a(valu("v_add_u32", V(45), sT[2], V(45))); a(valu("v_lshlrev_b32", V(45), 7, V(45))); a(valu("v_add_u32", V(45), 64 * 128, V(45)))
    return p
def x_touch(): return [touch(V(44), SRD_X, sXB, dst=V(46)), touch(V(45), SRD_X, sXB, dst=V(47))]
```

```python
from common import *

vTRe = [V(2), V(3)]; vTRo = [V(4), V(33)]; vTR2 = [V(5), V(6), V(7)]
vHW = V(13); vHR = V(14); vCSR = V(15); vCSW = V(32)
vD1 = [V(16), V(17)]; vD2 = [V(18), V(19)]; vSTO = [V(20), V(21)]
vRHO = [V(30), V(31)]
ACC = [V(208, 32), V(176, 32), V(144, 32), V(112, 32), V(64, 32)]
ONES = V(240, 4); CSD = [V(244, 4), V(108, 4)]; vBIAS = V(248, 6); BXT = [V(96, 4), V(100, 4)]; AXT = V(104, 4)
def xfrag(t, i): return A(4 * (2 * t + i), 4) if t < 32 else V(64 + 4 * (2 * (t - 32) + i), 4)
def hfrag(kk, i): return A(4 * (2 * kk + i), 4)
GC0 = -2.0 * math.sqrt(2.0 / math.pi) * math.log2(math.e)
GC1 = GC0 * 0.044715
GA = abs(GC1) ** (1.0 / 3.0)
GK = abs(GC0) / GA
GW = [2]
def gelu_items(acc, i, q):
    out = []
    b = 16 * i + 8 * q
    W = GW[0]
    T = [vT[0], vT[1], V(254), V(255)][:W]
    def nexp(t): return I(f"v_exp_f32_e64 {t}, -{t}", TRANS, rd=[t], wr=[t])
    for j in range(0, 8, W):
        X = [acc[b + j + k] for k in range(W)]
        out += [valu("v_mul_f32", x, x, vRHO[i]) for x in X]
        out += [valu("v_fma_f32", t, x, x, sC1) for x, t in zip(X, T)]
        out += [valu("v_mul_f32", t, x, t) for x, t in zip(X, T)]
        out += [nexp(t) for t in T]
        out += [valu("v_add_f32", t, "1.0", t) for t in T]
        out += [trans("v_rcp_f32", t, t) for t in T]
        out += [valu("v_mul_f32", t, x, t) for x, t in zip(X, T)]
        out += [valu("v_cvt_pk_bf16_f32", acc[b + (j + k) // 2], T[k], T[k + 1]) for k in range(0, W, 2)]
    return out

sXO = [S(84 + i) for i in range(9)]
def ffn_pre(rotK=True):
    p = []; a = p.append
    a(salu("s_mul_i32", sFS, sXH, 3)); a(salu("s_add_u32", sFS, sFS, sROLE)); a(salu("s_sub_u32", sFS, sFS, 1))
    a(salu("s_mul_i32", sB1, sFS, 768))
    p += dma_voff(vD1, 9216)
    return p

def build_ffn(N1=2, D=8, BARL=16, BARM=12, dma_pace=4, ypace=3, yslack=40, rotC=True, rotK=2, npre=4, npre2=6, DEL=10, DEL0=18,
              tlb=True, ctouch=True, gw=2, rotJ=True, rotT=0, xt=0, wt=0, xbias=20, xb0=4, p0=1, verbose=True):
    GW[0] = gw
    M = []
    B = Builder(D, None); M = B.M
    sXO = [S(54 + i) for i in range(9)]; sKO = [S(24), S(25), S(26), S(27), S(63), S(64), S(65), S(66), S(67)]
    sCP = [S(70 + i) for i in range(9)]
    sTP = [S(0), S(1), S(68), S(69), S(79), S(39)]
    sW2R = sXO[:6]
    sRT = S(53)
    if rotT == 6: RT = [raw(f"s_cmp_ge_u32 {sJ8}, 6", SALU, rd=[sJ8]), salu("s_cselect_b32", sT[3], 6, 0), salu("s_sub_u32", sRT, sJ8, sT[3])]
    elif rotT == 3: RT = [salu("s_mul_i32", sT[3], sJ8, 11), salu("s_lshr_b32", sT[3], sT[3], 5), salu("s_mul_i32", sT[3], sT[3], 3), salu("s_sub_u32", sRT, sJ8, sT[3]), salu("s_lshl_b32", sRT, sRT, 1)]
    elif rotT == 2: RT = [salu("s_and_b32", sRT, sJ8, 1), salu("s_mul_i32", sRT, sRT, 3)]
    else: RT = [salu("s_mov_b32", sRT, 0)]
    P0 = [salu("s_mul_i32", sT[4], sROLE, rotK)] + ([salu("s_add_u32", sT[4], sT[4], sJ8), raw(f"s_cmp_ge_u32 {sT[4]}, 9", SALU, rd=[sT[4]]), salu("s_cselect_b32", sT[3], 9, 0), salu("s_sub_u32", sT[4], sT[4], sT[3])] if rotJ else []) + rot_table(sXO[:2], sT[4], 9, 128, sXB, sT[1]) + rot_table(sKO[:2], sT[4], 9, 64 * 9216, sB1, sT[1])
    P0 += RT + rot_table(sTP[:1], sRT, 6, 128, None, sT[1])
    P = srd(SRD_X, sP[0:2], SLAB) + srd(SRD_W1, sP[8:10], 5308416)
    if xt: P += x_touch()
    if wt:
        a = P0.append
        a(valu("v_min_u32", vX3, 18 * wt - 1, vLANE))
        a(valu("v_mul_u32_u24", vX0, 57, vX3)); a(valu("v_lshrrev_b32", vX0, 10, vX0))
        a(valu("v_mul_u32_u24", vX1, 18, vX0)); a(valu("v_sub_u32", vX1, vX3, vX1))
        a(salu("s_mul_i32", sT[0], sW, 144)); a(salu("s_add_u32", sT[0], sT[0], sJ8))
        a(valu("v_lshl_add_u32", vX1, vX1, 3, sT[0])); a(valu("v_mul_u32_u24", vX1, 9216, vX1))
        a(valu("v_lshl_add_u32", V(48), vX0, 7, vX1))
        P.append(touch(V(48), SRD_W1, sB1, dst=V(49)))
    post = []; a = post.append
    post += rot_table(sXO, sT[4], 9, 128, sXB, sT[1])
    post += srd(SRD_B, sP[10:12], 9216) + srd(SRD_W2, sP[12:14], 5308416) + srd(SRD_WS, sP2[2:4], 64 << 20)
    post += rot_table(sKO, sT[4], 9, 64 * 9216, sB1, sT[1])
    post += rot_table(sTP, sRT, 6, 128, None, sT[1])
    post2 = []; a = post2.append
    post2 += [salu("s_mov_b32", sONE, "0x3f803f80"), salu("s_mov_b32", sMASK, "0xffff0000"), salu("s_mov_b32", sC1, f32(GK))]
    post2 += x_read_setup(True) + tr_base(vTRe[0], vTR2[0])
    a(salu("s_lshl_b32", sT[0], sR2, 11))
    a(valu("v_subrev_u32", vTRo[0], sT[0], vTRe[0])); a(valu("v_add_u32", vTRe[0], sT[0], vTRe[0]))
    a(valu("v_add_u32", vTRe[1], hex(65536), vTRe[0])); a(valu("v_add_u32", vTRo[1], hex(65536), vTRo[0]))
    for k in (1, 2): a(valu("v_add_u32", vTR2[k], hex(65536 * k), vTR2[0]))
    post2 += ones_sel(ONES)
    post3 = []; a = post3.append
    a(valu("v_lshlrev_b32", vX0, 1, vLANE)); a(valu("v_mov_b32", vX3, OOB))
    a(I(f"v_cmp_gt_u32 vcc, 32, {vLANE}", VALU, rd=[vLANE], wr=["vcc"]))
    a(salu("s_lshl_b32", sT[0], sC2, 6)); a(salu("s_add_u32", sT[0], sT[0], sB1))
    a(valu("v_cndmask_b32", vX0, vX3, vX0, "vcc", rd_extra=["vcc"]))
    a(valu("v_add_u32", vX0, sT[0], vX0))
    for s in range(6): a(buf_ld(vBIAS[s], vX0, SRD_B, sTP[s], op="buffer_load_ushort"))
    post3 += dma_voff(vD2, 1152)
    a(salu("s_mul_i32", sB2, sFS, 384 * 1152))
    if rotC: post3 += rot_table(sCP, sJ8, 9, 128, sB2, sT[1])
    a(salu("s_mul_i32", sSTB, sFS, SLAB)); a(salu("s_add_u32", sSTB, sSTB, sXB))
    if tlb:
        a(valu("v_min_u32", vX0, 1, vTID))
        a(valu("v_mul_u32_u24", vX1, 442368 - 4, vX0)); a(valu("v_mul_u32_u24", vX2, 147456 - 4, vX0))
        a(touch(vX1, SRD_W2, sB2)); a(touch(vX2, SRD_WS, sSTB))
    if rotC:
        a(salu("s_lshl_b32", sT[0], sB2, 5)); a(salu("s_sub_u32", sSTB, sSTB, sT[0]))
    a(valu("v_lshlrev_b32", vX1, 4, vLANE))
    a(salu("s_add_u32", sT[0], sM4, hex(BLK))); a(valu("v_add_u32", vHW, sT[0], vX1))
    a(salu("s_lshl_b32", sT[0], sR2, 13)); a(salu("s_add_u32", sT[0], sT[0], hex(BLK))); a(valu("v_add_u32", vHR, sT[0], vX1))
    a(salu("s_mul_i32", sT[0], sR2, 2 * 36864)); a(salu("s_lshl_b32", sT[1], sC2, 11)); a(salu("s_add_u32", sT[0], sT[0], sT[1]))
    a(valu("v_add_u32", vSTO[0], sT[0], vX1)); a(valu("v_add_u32", vSTO[1], 36864, vSTO[0]))
    a(salu("s_lshl_b32", sT[0], sC2, 8)); a(salu("s_add_u32", sT[0], sT[0], T_CS))
    a(valu("v_lshl_add_u32", vCSR, vLANE, 2, sT[0]))
    a(salu("s_lshl_b32", sT[1], sR2, 7)); a(valu("v_add_u32", vCSW, sT[1], vCSR))
    a(I(f"v_cmp_gt_u32 vcc, 16, {vLANE}", VALU, rd=[vLANE], wr=["vcc"]))
    a(valu("v_cndmask_b32", vCSW, vX3, vCSW, "vcc", rd_extra=["vcc"]))
    a(valu("v_mov_b32", AXT[3], 0))

    step_start = {}; step_end = {}; huse = {}; ext_at = {}; cs_last = {}
    pend_ext = []
    def maybe_ext():
        while pend_ext and len(M) >= pend_ext[0][1]:
            s, _ = pend_ext.pop(0); acc = ACC[s % 3]; ext_at[s] = len(M)
            for i in range(2): B.add(mfma32(acc[16 * i:16 * i + 16], AXT, BXT[i], acc[16 * i:16 * i + 16]))
    def pair(u, mk, acc, bfr, first):
        maybe_ext()
        idx = len(M)
        a_ = B.next_a(u, mk)
        for i in range(2): B.add(mfma32(acc[16 * i:16 * i + 16], a_, bfr[i], 0 if first else acc[16 * i:16 * i + 16]), i == 0, u)
        return a_, idx
    xlast5 = {}
    for s in range(6):
        for t in range(36):
            u = B.unit(("w1", s, t >> 2), vD1, SRD_W1, sKO[t >> 2], sTP[s])
            def mk(av, h, u=u, t=t):
                ad = u.addr + (t & 3) * 2048 + h * 512
                return ds_tr(av[2 * h:2 * h + 2], (vTRo if t & 1 else vTRe)[ad >> 16], ad & 0xffff)
            a_, idx = pair(u, mk, ACC[s % 3], [xfrag(t, 0), xfrag(t, 1)], t == 0)
            if t == 0: step_start[s] = idx
            B.xuse.setdefault(t, idx); xlast5[t] = idx + 1
            if t % 2 == 0:
                cs_last[s] = len(M); B.add(mfma16(CSD[s & 1], ONES, a_, CSD[s & 1] if t else 0), False, u)
        step_end[s] = len(M) - 1
        pend_ext.append((s, len(M) + (DEL if s else DEL0)))
    pacc = {}; order = [0, 3, 4, 1, 2]
    pass_end = {}; pass_start = {}
    groups = [list(range(N1))] + [[cp] for cp in range(N1, 9)]
    for grp in groups:
        for cp in grp: pacc[cp] = ACC[order[cp % 5]]
        for kk in range(24):
            for cp in grp:
                u = B.unit(("w2", cp, kk >> 2), vD2, SRD_W2, sCP[cp], sW2R[kk >> 2])
                def mk(av, h, u=u, kk=kk):
                    ad = u.addr + (kk & 3) * 2048 + h * 1024
                    return ds_tr(av[2 * h:2 * h + 2], vTR2[ad >> 16], ad & 0xffff)
                a_, idx = pair(u, mk, pacc[cp], [hfrag(kk, 0), hfrag(kk, 1)], kk == 0)
                huse.setdefault(kk, idx); pass_start.setdefault(cp, idx); pass_end[cp] = idx + 1
    must = [B.xuse[4 * U] - D for U in range(1, 9)] + [ext_at[s] - 6 for s in range(6)] + [step_start[5] + 13]
    must = sorted(set(must)); bars = []
    end = len(M) - 8
    for k, b in enumerate(must + [end]):
        if bars:
            lim = BARL if (bars[-1] < step_start[5] or bars[-1] > pass_end[N1 - 1]) else BARM
            while b - bars[-1] > lim + lim // 4:
                n = -(-(b - bars[-1]) // lim); bars.append(bars[-1] + (b - bars[-1]) // n if bars[-1] < step_start[5] else bars[-1] + lim)
                lim = BARL if (bars[-1] < step_start[5] or bars[-1] > pass_end[N1 - 1]) else BARM
        if b != end: bars.append(b)
    CB = [V(112, 16), V(128, 16)]; S4 = V(144, 4); Q4 = V(148, 4)
    xs = B.x_units(sXO, xfrag, 1, CB)
    B.xbias = xbias; B.xb0 = xb0
    B.dma_pace = lambda g: p0 if g < step_end[0] - 10 else dma_pace
    sc = B.make_sched(bars, [k * UNIT for k in range(1, 12)])
    sb = sorted(bars)
    for _ in range(npre): P += B.next_dma()
    P += post
    if ctouch:
        ct = code_touch(); P += ct
    for _ in range(2): P += B.next_dma()
    P += post2
    for _ in range(npre2 - npre - 2): P += B.next_dma()
    P += stamp()
    P += B.first_barrier()
    pub = lambda it, g: sc.to_publish.append(it)
    P3 = []
    for k, ins in enumerate(post3):
        P3.append(Item(lambda ins=ins: [ins], VAL, ins.cost, earliest=2, deadline=10 + (50 * k) // len(post3), name="p3"))
    B.stats_batches(CB, S4, Q4, [B.xuse[4 * U] + 8 for U in range(9)])
    e0 = B.xuse[32] + 9
    sf = stats_finish(S4, Q4, BXT[0], vRHO[0], GA, [vT[2], vT[3]])
    sf += [valu("v_lshlrev_b32", vT[2], 4, vTID), valu("v_and_b32", vT[3], 31, vLANE), salu("s_lshl_b32", sT[0], sW, 7), valu("v_lshl_add_u32", vT[3], vT[3], 2, sT[0])]
    SF = [Item(lambda ins=ins: [ins], VAL, ins.cost, earliest=e0, deadline=ext_at[0] - 10, name="sf") for ins in sf]
    wr = [item(ds_wr(vT[2], BXT[0], T_BX), deadline=ext_at[0] - 9, name="bxw"), item(ds_wr(vT[3], vRHO[0], T_RHO), deadline=ext_at[0] - 9, name="rhow")]
    for w in wr: w.on_emit = pub
    ad2 = [salu("s_lshl_b32", sT[0], sC2, 10), valu("v_subrev_u32", vT[2], sT[0], vT[2]), salu("s_lshl_b32", sT[0], sC2, 7), valu("v_subrev_u32", vT[3], sT[0], vT[3])]
    AD2 = [Item(lambda ins=ins: [ins], VAL, ins.cost, deadline=ext_at[0] - 8, name="ad2") for ins in ad2]
    rd = [item(ds_rd(BXT[i], vT[2], T_BX + 1024 * i), deadline=ext_at[0] - 5, name="bxr") for i in range(2)]
    rd += [item(ds_rd(vRHO[i], vT[3], T_RHO + 128 * i), deadline=ext_at[0] - 5, name="rhor") for i in range(2)]
    rd[0].cond = lambda g: all(w.pub is not None for w in wr)
    B.need(ext_at[0], rd); B.need(step_start[2], SF)
    W2T = [item(salu("s_mul_i32", sW2R[s], sTP[s], 576), earliest=step_start[1], deadline=step_start[2], name="w2t") for s in range(6)]
    sc.add(Stream("setup", P3 + SF + wr + AD2 + rd + W2T))
    CS = []
    for s in range(6):
        d = CSD[s & 1]; o = (s & 1) * 128
        w = item(I(f"ds_write2_b32 {vCSW}, {d[0]}, {d[1]} offset0:{o} offset1:{o+16}", LDSW, rd=[vCSW, d[0], d[1]], cost=2), earliest=cs_last[s] + 3, deadline=ext_at[s] - 8, name=f"csw{s}")
        w.on_emit = pub
        r = item(ds_rd(vT[4], vCSR, (s & 1) * 512), deadline=ext_at[s] - 6, name=f"csr{s}"); r.cond = lambda g, w=w: w.pub is not None
        bl = [valu("v_lshlrev_b32", vT[5], 16, vBIAS[s]), valu("v_mov_b32", AXT[2], vBIAS[s]),
              valu("v_cvt_pk_bf16_f32", AXT[0], vT[4], vT[4]), valu("v_and_b32", AXT[1], sMASK, AXT[0]), valu("v_sub_f32", vT[4], vT[4], AXT[1]),
              valu("v_cvt_pk_bf16_f32", AXT[1], vT[4], vT[5])]
        BL = [item(x, earliest=ext_at[s] - 3, deadline=ext_at[s] - 2, name=f"ax{s}") for x in bl]
        CS += [w, r] + BL; B.need(ext_at[s], BL)
    sc.add(Stream("cs", CS))
    last_user = {b: xs[max(U for U in range(9) if U % 4 == b)].readers for b in range(4)}
    h_w = {}; g_items = []; hr_items = []
    for s in range(6):
        acc = ACC[s % 3]
        b = (s + 1) % 4
        prev = last_user[b]
        ws_ = []
        nxt = step_start[s + 3] - 2 if s + 3 < 6 else 10**9
        pb = [x for x in sb if x <= huse[4 * s] - 4]
        dl = min(nxt, pb[-1] - 3)
        if s + 1 < 6: dl = min(dl, ext_at[s + 1] + 24)
        for i in range(2):
            for q in range(2):
                d2 = dl - 3 * (3 - (2 * i + q))
                for ins in gelu_items(acc, i, q): g_items.append(item(ins, earliest=ext_at[s] + i + 2, deadline=d2 - 1, name=f"g{s}"))
                w = item(ds_wr(vHW, acc[16 * i + 8 * q:16 * i + 8 * q + 4], b * 16384 + i * 2048 + q * 1024), deadline=d2, name=f"hw{s}.{i}.{q}")
                w.cond = lambda g, prev=prev: all(r.pub is not None for r in prev)
                w.on_emit = pub
                ws_.append(w); g_items.append(w)
        h_w[s] = ws_
        if s + 3 < 6: B.need(step_start[s + 3], ws_)
        rs = []
        for c in range(2):
            for q in range(2):
                kk = 4 * s + 2 * c + q
                for i in range(2):
                    r = item(ds_rd(hfrag(kk, i), vHR, b * 16384 + c * 4096 + i * 2048 + q * 1024),
                             earliest=xlast5[kk], deadline=huse[kk] - 3, name=f"hr{kk}.{i}")
                    r.cond = lambda g, ws_=ws_: all(w.pub is not None for w in ws_)
                    r.on_emit = pub
                    rs.append(r); B.need(huse[kk], [r])
        hr_items += rs
        last_user[b] = rs
        if s + 4 < 6:
            for r in rs: r.deadline = min(r.deadline, step_start[5] + 11 + 24 * s)
    B.release_blocks(last_user)
    sc.add(Stream("gelu", g_items)); sc.add(Stream("hr", hr_items))
    sts = B.y_stream([(pacc[cp], pass_end[cp], sCP[cp] if rotC else cp * 4096) for cp in range(9)], vSTO, pace=ypace, slack=yslack)
    for cp in range(9):
        if cp >= 5: B.need(pass_start[cp], sts[cp - 5])
        else:
            o = order[cp % 5]
            if o < 3: B.need(pass_start[cp], h_w[max(s for s in range(6) if s % 3 == o)])
    pro_stamp = stamp()
    for g in (step_end[0], step_end[2], step_end[5], pass_end[N1 - 1], pass_end[5], len(M) - 1):
        for ins in stamp(): sc.fix(g, Item(lambda ins=ins: [ins], PRE, 1))
    body = B.finish(P, "FFN", verbose)
    P += pro_stamp
    return P0, P, body
```

```python
import re

MFMA, VALU, TRANS, LDSR, LDSW, VMLD, VMST, DMA, SALU, WAIT, BAR, NOP, OTHER, SMEM, LABEL = \
    "mfma valu trans ldsr ldsw vmld vmst dma salu wait bar nop other smem label".split()

def R(p, lo, n=1):
    return f"{p}{lo}" if n == 1 else f"{p}[{lo}:{lo+n-1}]"
def regs(p, lo, n=1):
    return [f"{p}{lo+i}" for i in range(n)]

class Reg:
    def __init__(self, p, lo, n=1):
        self.p, self.lo, self.n = p, lo, n
    def __str__(self): return R(self.p, self.lo, self.n)
    def __getitem__(self, i):
        if isinstance(i, slice):
            a = i.start or 0; b = self.n if i.stop is None else i.stop
            assert 0 <= a < b <= self.n
            return Reg(self.p, self.lo + a, b - a)
        assert 0 <= i < self.n
        return Reg(self.p, self.lo + i, 1)
    def l(self): return regs(self.p, self.lo, self.n)
def V(lo, n=1): return Reg("v", lo, n)
def A(lo, n=1): return Reg("a", lo, n)
def S(lo, n=1): return Reg("s", lo, n)

def _l(x):
    out = []
    for e in x:
        if isinstance(e, Reg): out += e.l()
        elif isinstance(e, str): out.append(e)
        elif isinstance(e, (list, tuple)): out += _l(e)
    return out

class I:
    __slots__ = ("t", "k", "rd", "wr", "c", "cost", "tag", "vm", "lg", "dpp", "perm", "cyc")
    def __init__(self, t, k, rd=(), wr=(), c=(), cost=None, tag=None, vm=None, lg=None, dpp=False, perm=False):
        self.t, self.k = t, k
        self.rd, self.wr, self.c = _l(rd), _l(wr), _l(c)
        self.tag = tag; self.vm = vm; self.lg = lg; self.dpp = dpp; self.perm = perm
        if cost is None:
            cost = {MFMA: 2, VALU: 1, TRANS: 2, LDSR: 1, LDSW: 6, VMLD: 2, VMST: 3, DMA: 1.5, SALU: 1, WAIT: 1, BAR: 1, NOP: 1, OTHER: 1, SMEM: 1, LABEL: 0}[k]
        self.cost = cost; self.cyc = 32
    def __repr__(self): return self.t

def isreg(x): return isinstance(x, Reg)
def valu(op, d, *src, extra="", k=VALU, rd_d=False, dpp=False, perm=False, wr_extra=(), rd_extra=()):
    t = f"{op} {d}, " + ", ".join(str(s) for s in src) + (" " + extra if extra else "")
    rd = [s for s in src if isreg(s)] + ([d] if rd_d else []) + list(rd_extra)
    return I(t, k, rd=rd, wr=[d] + list(wr_extra), dpp=dpp, perm=perm)
def trans(op, d, s, extra=""): return valu(op, d, s, extra=extra, k=TRANS)
def salu(op, d, *src):
    t = f"{op} {d}, " + ", ".join(str(s) for s in src)
    return I(t, SALU, rd=[s for s in src if isreg(s) or s == "m0"], wr=[d])
def mfma32(d, a, b, c):
    return I(f"v_mfma_f32_32x32x16_bf16 {d}, {a}, {b}, {c}", MFMA, rd=[a, b], wr=[d], c=[c] if isreg(c) else [])
def mfma16(d, a, b, c):
    i = I(f"v_mfma_f32_16x16x32_bf16 {d}, {a}, {b}, {c}", MFMA, rd=[a, b], wr=[d], c=[c] if isreg(c) else []); i.cyc = 16
    return i
def ds_tr(d, addr, off):
    assert 0 <= off < 65536, off
    return I(f"ds_read_b64_tr_b16 {d}, {addr} offset:{off}", LDSR, rd=[addr], wr=[d])
def ds_rd(d, addr, off):
    assert 0 <= off < 65536, off
    op = {1: "ds_read_b32", 2: "ds_read_b64", 4: "ds_read_b128"}[d.n]
    return I(f"{op} {d}, {addr} offset:{off}", LDSR, rd=[addr], wr=[d])
def ds_wr(addr, s, off, op=None):
    assert 0 <= off < 65536, off
    op = op or {1: "ds_write_b32", 2: "ds_write_b64", 4: "ds_write_b128"}[s.n]
    return I(f"{op} {addr}, {s} offset:{off}", LDSW, rd=[addr, s], cost={1: 2, 2: 3, 4: 6}[s.n])
def buf_ld(d, voff, srd, soff, off=0, aux="", op=None):
    op = op or {1: "buffer_load_dword", 2: "buffer_load_dwordx2", 4: "buffer_load_dwordx4"}[d.n]
    assert 0 <= off < 4096
    return I(f"{op} {d}, {voff}, {srd}, {soff} offen" + (f" offset:{off}" if off else "") + (" " + aux if aux else ""), VMLD,
             rd=[voff, srd] + ([soff] if isreg(soff) else []), wr=[d])
def buf_st(s, voff, srd, soff, off=0, aux="", op=None):
    op = op or {1: "buffer_store_dword", 2: "buffer_store_dwordx2", 4: "buffer_store_dwordx4"}[s.n]
    assert 0 <= off < 4096
    return I(f"{op} {s}, {voff}, {srd}, {soff} offen" + (f" offset:{off}" if off else "") + (" " + aux if aux else ""), VMST,
             rd=[s, voff, srd] + ([soff] if isreg(soff) else []))
def dma(voff, srd, soff, off=0, tag=None):
    return I(f"buffer_load_dwordx4 {voff}, {srd}, {soff} offen" + (f" offset:{off}" if off else "") + " lds", DMA,
             rd=[voff, srd, "m0"] + ([soff] if isreg(soff) else []), tag=tag)
def wait(vm=None, lg=None):
    p = []
    if vm is not None: p.append(f"vmcnt({vm})")
    if lg is not None: p.append(f"lgkmcnt({lg})")
    return I("s_waitcnt " + " ".join(p), WAIT, vm=vm, lg=lg)
def wait_ops(vm_ops=(), lg_ops=(), regs_ready=()):
    i = I("s_waitcnt <sym>", WAIT)
    i.tag = ("sym", list(vm_ops), list(lg_ops), _l(regs_ready))
    return i
def bar(): return I("s_barrier", BAR)
def nop(n=0): return I(f"s_nop {n}", NOP, cost=n + 1)
def raw(t, k=OTHER, rd=(), wr=()): return I(t, k, rd=rd, wr=wr)
def label(n): return I(f"{n}:", LABEL)

VM_KINDS = (VMLD, VMST, DMA)
LG_KINDS = (LDSR, LDSW)

def finalize(prog, stats=None):
    out = []
    vmq, lgq = [], []
    smem_pending = set()
    ws = 0
    last = {}
    st = {"auto_wait": 0, "nops": 0, "dropped_wait": 0}
    def emit(i):
        nonlocal ws
        out.append(i)
        if i.k == NOP: ws += int(i.t.split()[1]) + 1
        elif i.k != LABEL: ws += 1
    def apply_wait(vm, lg):
        if vm is not None:
            del vmq[:max(0, len(vmq) - vm)]
        if lg is not None:
            del lgq[:max(0, len(lgq) - lg)]
            if lg == 0: smem_pending.clear()
    def need(q, rs):
        idx = -1
        for n, o in enumerate(q):
            if any(r in o.wr for r in rs): idx = n
        return None if idx < 0 else len(q) - 1 - idx
    def need_ops(q, ops):
        idx = -1
        ids = set(id(o) for o in ops)
        for n, o in enumerate(q):
            if id(o) in ids: idx = n
        return None if idx < 0 else len(q) - 1 - idx
    def mn(a, b):
        if a is None: return b
        if b is None: return a
        return min(a, b)
    for i in prog:
        if i.k == WAIT:
            if i.tag and i.tag[0] == "sym":
                vm = mn(need_ops(vmq, i.tag[1]), need(vmq, i.tag[3]))
                lg = mn(need_ops(lgq, i.tag[2]), need(lgq, i.tag[3]))
                if vm is None and lg is None:
                    st["dropped_wait"] += 1
                    continue
                if lg is not None and smem_pending: lg = 0
                if vm is not None: vm = min(vm, 63)
                if lg is not None: lg = min(lg, 15)
                w = wait(vm, lg); emit(w); apply_wait(vm, lg)
            else:
                emit(i); apply_wait(i.vm, i.lg)
            continue
        touched = i.rd + i.wr + i.c
        vm = need(vmq, touched); lg = need(lgq, touched)
        if any(r in smem_pending for r in touched): lg = 0
        if lg is not None and smem_pending: lg = 0
        if vm is not None or lg is not None:
            if vm is not None: vm = min(vm, 63)
            if lg is not None: lg = min(lg, 15)
            emit(wait(vm, lg)); apply_wait(vm, lg); st["auto_wait"] += 1
        if i.k in LG_KINDS and len(lgq) >= 15:
            emit(wait(None, 14)); apply_wait(None, 14); st["auto_wait"] += 1
        if i.k in VM_KINDS and len(vmq) >= 63:
            emit(wait(62, None)); apply_wait(62, None); st["auto_wait"] += 1
        req = 0
        def chk(cls, rs, n):
            nonlocal req
            for r in rs:
                p = last.get((cls, r))
                if p is not None:
                    have = ws - p - 1
                    if have < n: req = max(req, n - have)
        isv = i.k in (VALU, TRANS)
        mem = i.k in VM_KINDS or i.k in LG_KINDS
        if i.k == MFMA:
            chk("valu_w", i.rd + i.c, 2)
            chk("mfma_w", i.rd, 12)
            for r in i.c:
                p = last.get(("mfma_w", r))
                if p is not None and last.get(("mfma_rng", r)) != (i.c[0], len(i.c)):
                    have = ws - p - 1
                    if have < 10: req = max(req, 10 - have)
            if i.c != i.wr: chk("mfma_w", i.wr, 12)
            chk("exec_w", ["exec"], 4)
        if isv or mem:
            chk("mfma_w", i.rd + i.wr, 12)
        isdot = i.t.startswith("v_dot")
        if i.k == MFMA or mem or (isv and not isdot): chk("dot_w", i.rd + i.wr + i.c, 3)
        if isdot: chk("dot_w", i.rd[:-1], 3)
        if isv:
            chk("mfma_c", i.wr, 7)
            chk("st_data", i.wr, 2)
            chk("vsgpr_w", i.rd, 2)
            if i.k == VALU: chk("trans_w", i.rd, 1)
            else: chk("trans_w", i.rd, 1)
            if i.dpp or i.perm: chk("valu_w", i.rd, 2)
            if i.dpp: chk("exec_w", ["exec"], 5)
            if i.t.startswith("v_readfirstlane") or i.t.startswith("v_readlane"): chk("valu_w", i.rd, 1)
        if mem:
            chk("mfma_c", i.wr, 7)
            chk("st_data", i.wr, 1)
            chk("trans_w", i.rd, 1)
        if i.k in VM_KINDS:
            chk("vsgpr_w", i.rd, 5)
        if i.k == DMA: chk("m0_w", ["m0"], 1)
        if i.k in (SALU, OTHER, SMEM): chk("vsgpr_w", i.rd, 4)
        while req > 0:
            n = min(req, 16); emit(nop(n - 1)); st["nops"] += n; req -= n
        here = ws
        emit(i)
        if i.k == MFMA:
            for r in i.wr:
                last[("mfma_w", r)] = here; last[("mfma_rng", r)] = (i.wr[0], len(i.wr))
            for r in i.c: last[("mfma_c", r)] = here
        if isv:
            for r in i.wr:
                if r[0] in "va" and r != "vcc": last[("valu_w", r)] = here
                else: last[("vsgpr_w", r)] = here
                if r == "exec": last[("exec_w", r)] = here
                if isdot: last[("dot_w", r)] = here
                if i.k == TRANS: last[("trans_w", r)] = here
                else: last.pop(("trans_w", r), None)
                last.pop(("mfma_w", r), None)
        if i.k == SALU and "m0" in i.wr: last[("m0_w", "m0")] = here
        if i.k == VMST and len(i.rd) >= 3:
            for r in i.rd:
                if r[0] in "va": last[("st_data", r)] = here
        if i.k in VM_KINDS: vmq.append(i)
        if i.k in LG_KINDS: lgq.append(i)
        if i.k == SMEM: smem_pending.update(i.wr)
    if stats is not None: stats.update(st)
    return out

def estimate(prog):
    cyc = 0.0; gap = None; prev = None; tot_m = 0; mc = 32.0
    def close():
        nonlocal cyc, gap
        if gap is not None: cyc += max(mc, gap)
        gap = None
    free = False
    for i in prog:
        if i.k == LABEL: continue
        if i.k == MFMA:
            close(); mc = float(i.cyc); gap = 8.0; free = True; tot_m += 1; prev = i; continue
        c = i.cost * 4.0
        if i.k in (SALU, WAIT, BAR) and free: c = 0.0
        if (i.k in LG_KINDS or i.k in VM_KINDS) and prev is not None and prev.k in (VALU, TRANS): c += 8.0
        free = False
        if gap is not None and i.t.startswith('v_dot'): gap = max(gap, mc + 12)
        if gap is None: cyc += c
        else: gap += c
        prev = i
    close()
    return cyc, tot_m

def text(prog):
    return "\n".join(("" if i.k == LABEL else "  ") + i.t for i in prog)
```

```python
from common import *
import ffn, attn
def build_k2(PRE0=4, AHEAD=10, XPOS=8):
    p = []; a = p.append
    SX, SO, SW, SB = S(4, 4), S(8, 4), S(12, 4), S(16, 4)
    a(raw("s_cmp_ge_u32 s2, 256", SALU)); a(raw("s_cbranch_scc1 L_end2"))
    if Stamps.on: a(I("s_memrealtime s[40:41]", SMEM, wr=[S(40, 2)]))
    a(I("s_load_dwordx2 s[22:23], s[0:1], 80", SMEM, wr=[S(22, 2)]))
    a(I("s_load_dwordx2 s[20:21], s[0:1], 0", SMEM, wr=[S(20, 2)]))
    a(I("s_load_dwordx4 s[24:27], s[0:1], 56", SMEM, wr=[S(24, 4)]))
    a(valu("v_readfirstlane_b32", S(28), V(0)))
    a(valu("v_and_b32", V(1), 63, V(0)))
    a(salu("s_and_b32", S(31), S(2), 7)); a(salu("s_lshl_b32", S(31), S(31), 3)); a(salu("s_lshr_b32", S(32), S(2), 5)); a(salu("s_add_u32", S(31), S(31), S(32)))
    a(salu("s_bfe_u32", S(32), S(2), hex((2 << 16) | 3)))
    a(salu("s_lshr_b32", S(28), S(28), 6))
    a(salu("s_mul_i32", S(32), S(32), 9)); a(salu("s_add_u32", S(32), S(32), S(28)))
    a(salu("s_mul_i32", S(29), S(31), 36)); a(salu("s_add_u32", S(29), S(29), S(32)))
    a(salu("s_lshl_b32", S(30), S(29), 10))
    a(valu("v_lshlrev_b32", V(2), 4, V(1)))
    a(salu("s_mul_i32", S(33), S(31), 32 * 1152)); a(salu("s_lshl_b32", S(34), S(32), 5)); a(salu("s_add_u32", S(33), S(33), S(34)))
    a(salu("s_mul_i32", S(36), S(31), 36864)); a(salu("s_lshl_b32", S(37), S(28), 12)); a(salu("s_add_u32", S(36), S(36), S(37))); a(salu("s_add_u32", S(36), S(36), hex(attn.OOFF)))
    a(salu("s_mul_i32", S(38), S(32), 18432)); a(salu("s_add_u32", S(38), S(38), hex(attn.WOFF)))
    a(salu("s_mov_b32", "m0", S(37)))
    a(valu("v_and_b32", V(3), 31, V(1))); a(valu("v_mul_u32_u24", V(3), 1152, V(3)))
    a(valu("v_lshrrev_b32", V(4), 5, V(1)))
    a(valu("v_lshl_add_u32", V(5), V(4), 3, V(3)))
    a(valu("v_lshl_add_u32", V(6), V(4), 4, V(3)))
    a(valu("v_lshlrev_b32", V(7), 3, V(4)))
    a(wait(lg=0))
    p += srd(SW, S(22, 2), 64 << 20)
    od = []
    for k in range(4):
        d = dma(V(2), SW, S(36), off=1024 * k); a(d); od.append(d)
    def st(k):
        if Stamps.on: a(I(f"s_memrealtime s[{44+2*k}:{45+2*k}]", SMEM, wr=[S(44 + 2 * k, 2)]))
    AF = [V(88 + 4 * (t % 12), 4) for t in range(18)]
    L = [V(40 + 4 * i, 4) for i in range(12)]
    X = V(8, 4); B = V(12, 4)
    Sx = V(136, 8); Y = V(144, 8)
    BF = [V(16 + 4 * k, 4) for k in range(6)]
    seq = []
    ia = ip = 0
    while ia < 18 or ip < 12:
        if ip < 12 and ip * 3 <= ia * 2: seq.append(("P", ip)); ip += 1
        else: seq.append(("A", ia)); ia += 1
    seq.insert(XPOS, ("X", 0))
    def ld(kind, n):
        if kind == "A":
            o = [buf_ld(AF[n], V(2), SW, S(38), off=1024 * (n & 3))]
            if n & 3 == 3: o.append(salu("s_add_u32", S(38), S(38), 4096))
            return o
        if kind == "P": return [buf_ld(L[n], V(2), SW, S(30)), salu("s_add_u32", S(30), S(30), hex(SLAB))]
        return [buf_ld(X[0:2], V(5), SX, S(33)), buf_ld(X[2:4], V(5), SX, S(33), off=16),
                buf_ld(B[0:2], V(7), SB, S(34)), buf_ld(B[2:4], V(7), SB, S(34), off=16)]
    def acc(dst, src, first):
        for j in range(4):
            if first:
                a(valu("v_lshlrev_b32", dst[2 * j], 16, src[j])); a(valu("v_and_b32", dst[2 * j + 1], S(35), src[j]))
            else:
                a(valu("v_lshlrev_b32", V(3), 16, src[j])); a(valu("v_and_b32", src[j], S(35), src[j]))
                a(valu("v_add_f32", dst[2 * j], dst[2 * j], V(3))); a(valu("v_add_f32", dst[2 * j + 1], dst[2 * j + 1], src[j]))
    ptr = 0
    for _ in range(PRE0): p.extend(ld(*seq[ptr])); ptr += 1
    p += srd(SX, S(20, 2), SLAB) + srd(SB, S(24, 2), 1152) + srd(SO, S(26, 2), SLAB)
    a(salu("s_mov_b32", S(35), "0xffff0000"))
    st(0)
    a(wait_ops(vm_ops=od)); a(bar())
    st(1)
    for _ in range(AHEAD - PRE0): p.extend(ld(*seq[ptr])); ptr += 1
    rd = lambda n: ds_rd(BF[n % 6], V(2), (n & 1) * 18432 + (n >> 1) * 1024)
    for n in range(4): a(rd(n))
    for kind, n in seq:
        if kind == "A": a(wait_ops(regs_ready=[AF[n]]))
        elif kind == "P": a(wait_ops(regs_ready=[L[n]]))
        if ptr < len(seq): p.extend(ld(*seq[ptr])); ptr += 1
        if kind == "A":
            for nt in range(2):
                m = 2 * n + nt
                a(mfma16(Sx[4 * nt:4 * nt + 4], AF[n], BF[m % 6], Sx[4 * nt:4 * nt + 4] if n else 0))
                if m + 4 < 36: a(rd(m + 4))
        elif kind == "P": acc(Y, L[n], n == 0)
    st(2)
    st(3)
    for r in range(4):
        a(I(f"v_permlane16_swap_b32 {Sx[r]}, {Sx[r+4]}", VALU, rd=[Sx[r], Sx[r + 4]], wr=[Sx[r], Sx[r + 4]], perm=True))
    T = V(24, 8)
    acc(T, B, True)
    a(salu("s_mov_b32", S(39), f32(1.0 / ffn.GA)))
    for j in range(8): a(valu("v_fma_f32", Y[j], Y[j], S(39), T[j]))
    for j in range(8): a(valu("v_mul_f32", T[j], f32(-math.log2(math.e)), Y[j]))
    for j in range(8): a(trans("v_exp_f32", T[j], T[j]))
    for j in range(8): a(valu("v_add_f32", T[j], "1.0", T[j]))
    for j in range(8): a(trans("v_rcp_f32", T[j], T[j]))
    for j in range(8): a(valu("v_mul_f32", Y[j], Y[j], T[j]))
    acc(T, X, True)
    for j in range(8): a(valu("v_fma_f32", Y[j], Y[j], Sx[j], T[j]))
    O = V(32, 4)
    for j in range(4): a(valu("v_cvt_pk_bf16_f32", O[j], Y[2 * j], Y[2 * j + 1]))
    for j in range(2):
        a(I(f"v_permlane32_swap_b32 {O[j]}, {O[j+2]}", VALU, rd=[O[j], O[j + 2]], wr=[O[j], O[j + 2]], perm=True))
    st(4)
    a(buf_st(O, V(6), SO, S(33)))
    if Stamps.on:
        a(wait(vm=0)); a(I("s_memrealtime s[42:43]", SMEM, wr=[S(42, 2)])); a(wait(lg=0))
        a(valu("v_mov_b32", V(8), S(40))); a(valu("v_mov_b32", V(9), S(42))); a(valu("v_mov_b32", V(3), 0))
        a(salu("s_lshl_b32", S(29), S(29), 3)); a(salu("s_add_u32", S(29), S(29), hex(49 << 20)))
        a(raw("s_mov_b64 exec, 1", SALU))
        a(buf_st(V(8, 2), V(3), SW, S(29)))
        for k in range(5): a(valu("v_mov_b32", V(10 + k), S(44 + 2 * k)))
        a(salu("s_lshl_b32", S(29), S(29), 2)); a(salu("s_and_b32", S(29), S(29), "0xfffff")); a(salu("s_add_u32", S(29), S(29), hex(50 << 20)))
        a(buf_st(V(8, 4), V(3), SW, S(29))); a(buf_st(V(12, 4), V(3), SW, S(29), off=16))
    return p
```

```python
from fw import *

PRE, MEM, VAL, LAST = 0, 1, 2, 3

class Item:
    __slots__ = ("make", "cls", "cost", "earliest", "deadline", "cond", "gap", "ins", "pub", "name", "on_emit", "lat")
    def __init__(self, make, cls, cost, earliest=-1, deadline=10**9, cond=None, name="", on_emit=None):
        self.make, self.cls, self.cost = make, cls, cost
        self.earliest, self.deadline, self.cond = earliest, deadline, cond
        self.gap = None; self.ins = None; self.pub = None; self.name = name; self.on_emit = on_emit
def item(ins, **kw):
    cls = PRE if ins.k in (SALU, WAIT, BAR) else (MEM if ins.k in LG_KINDS + VM_KINDS else VAL)
    return Item(lambda: [ins], cls, ins.cost, **kw)

class Stream:
    def __init__(self, name, items, pace=0, prio=False):
        self.prio = prio
        self.name, self.items, self.pos = name, items, 0
        self.last_gap, self.last_cls = None, None
        self.pace = pace
        self.last_mem_gap = -10**9
        d = 10**9
        for it in reversed(items):
            d = min(d, it.deadline); it.deadline = d
    def head(self): return self.items[self.pos] if self.pos < len(self.items) else None

class Sched:
    def __init__(self, mfmas, bar_every=8, cap=6.0):
        self.M = mfmas; self.n = len(mfmas); self.cap = cap
        self.streams = []
        self.fixed = {}
        self.bars = set(range(bar_every - 1, self.n, bar_every))
        self.to_publish = []
        self.dma_need = []
        self.on_bar = []
        self.gap = -1
        self.out = []
        self.overflow = 0.0
    def add(self, s): self.streams.append(s); return s
    def fix(self, gap, it): self.fixed.setdefault(max(gap, -1), []).append(it)
    def next_bar(self, g):
        c = [b for b in self.bars if b > g]
        return min(c) if c else 10**9
    def ready(self, s, it, g, force=False):
        if it.earliest > g: return False
        if it.cond is not None and not it.cond(g): return False
        if s.last_gap == g and it.cls < s.last_cls: return False
        if not force and it.cls == MEM and g - s.last_mem_gap < (s.pace(g) if callable(s.pace) else s.pace): return False
        return True
    def emit(self, it, g, slots, s=None):
        it.ins = it.make(); it.gap = g
        slots[it.cls] += it.ins
        if s is not None:
            s.pos += 1; s.last_gap = g; s.last_cls = it.cls
            if it.cls == MEM: s.last_mem_gap = g
        if it.on_emit: it.on_emit(it, g)
    def barrier_ops(self, g, force_all=False):
        nb = self.next_bar(g)
        vm_ops = []
        rest = []
        for fr, it in self.dma_need:
            if fr < nb:
                assert it.gap is not None, f"DMA {it.name} needed at gap {fr} not issued by barrier at {g}"
                vm_ops += it.ins; it.pub = g
            else: rest.append((fr, it))
        self.dma_need = rest
        lg_ops = []; keep = []
        for it in self.to_publish:
            if it.gap is not None and (force_all or it.gap <= g - 2):
                lg_ops += it.ins; it.pub = g
            else: keep.append(it)
        self.to_publish = keep
        return [wait_ops(vm_ops=vm_ops, lg_ops=lg_ops), bar()]
    def run_gap(self, g, cap):
        slots = [[], [], [], []]
        used = 0.0
        free_pre = True
        if g in self.bars:
            slots[PRE] += self.barrier_ops(g); used += 1; free_pre = False
            for cb in self.on_bar: cb(g)
        if g + 1 < self.n:
            m = self.M[g + 1]
            slots[PRE].append(wait_ops(regs_ready=m.rd + m.c))
            if getattr(m, "tag", None) == "newA":
                if not free_pre: used += 1
                free_pre = False
        for it in self.fixed.pop(g, []):
            self.emit(it, g, slots); used += it.cost
        while True:
            best = None
            for s in self.streams:
                it = s.head()
                if it is None: continue
                must = it.deadline <= g
                if not self.ready(s, it, g, force=must): continue
                c = 0.0 if (it.cls == PRE and free_pre) else it.cost
                if s.prio and not (it.cls == PRE and not free_pre and not must):
                    best = (s, it, c); break
                if not must and used + c > cap + (0.51 if c <= 2 else c - 2.0 if used <= 2 else 0): continue
                if best is None or it.deadline < best[1].deadline: best = (s, it, c)
            if best is None: break
            s, it, c = best
            if it.cls == PRE: free_pre = False
            self.emit(it, g, slots, s); used += c
        if used > cap: self.overflow += used - cap
        return slots[PRE] + slots[MEM] + slots[VAL] + slots[LAST]
    def run(self):
        out = []
        for g in range(0, self.n):
            self.gap = g
            out.append(self.M[g])
            out += self.run_gap(g, self.cap if self.M[g].cyc == 32 else 2.0)
        g = self.n
        guard = 0
        while any(s.head() is not None for s in self.streams):
            self.gap = g
            o = self.run_gap(g, 1000.0)
            out += o
            g += 1; guard += 1
            assert guard < 200, [ (s.name, s.head().name) for s in self.streams if s.head() is not None]
        late = [(s.name, it.name, it.gap, it.deadline) for s in self.streams for it in s.items if it.gap > it.deadline]
        self.late = late
        return out

class LDSAlloc:
    def __init__(self, units):
        self.free = list(units)
    def avail(self): return len(self.free) > 0
    def get(self): return self.free.pop(0)
    def put(self, u): self.free.append(u)
```

```python
import sys
sys.path.insert(0, "gen2")
from common import *
import ffn

KNAME = "recurrent_scan__linear_attn_block__dense_activation_gelu__prompt_kernel"

def k1_entry():
    p = []; a = p.append
    a(raw("s_cmp_ge_u32 s2, 256", SALU)); a(raw("s_cbranch_scc1 L_end"))
    a(I("s_load_dwordx16 s[64:79], s[0:1], 0", SMEM, wr=[sP]))
    a(I("s_load_dwordx4 s[80:83], s[0:1], 72", SMEM, wr=[sP2]))
    p += stamp() + rstamp(10)
    a(valu("v_readfirstlane_b32", sW, V(0)))
    a(salu("s_and_b32", sT[0], sWG, 7))
    a(salu("s_lshr_b32", sT[1], sWG, 3))
    a(salu("s_and_b32", sJ8, sT[1], 7))
    a(salu("s_and_b32", sRB, sT[0], 1)); a(salu("s_lshl_b32", sRB, sRB, 3)); a(salu("s_add_u32", sRB, sRB, sJ8))
    a(salu("s_lshr_b32", sROLE, sT[1], 3))
    a(salu("s_lshr_b32", sXH, sT[0], 1))
    a(salu("s_lshr_b32", sW, sW, 6))
    a(salu("s_lshr_b32", sR2, sW, 1)); a(salu("s_and_b32", sC2, sW, 1))
    p += entry_lane_setup()
    a(raw(f"s_cmp_eq_u32 {sROLE}, 0", SALU, rd=[sROLE])); a(raw("s_cbranch_scc1 L_attn"))
    return p

def ffn_entry():
    return ffn.ffn_pre() + [wait(lg=0)]

def kd(name, v, acc, sg=102):
    return f""".p2align 6
.amdhsa_kernel {name}
  .amdhsa_next_free_vgpr {v}
  .amdhsa_next_free_sgpr {sg}
  .amdhsa_accum_offset {acc}
  .amdhsa_group_segment_fixed_size 0
  .amdhsa_kernarg_size 88
  .amdhsa_user_sgpr_count 2
  .amdhsa_user_sgpr_kernarg_segment_ptr 1
  .amdhsa_system_sgpr_workgroup_id_x 1
.end_amdhsa_kernel"""

def build(path, **kw):
    import k2, attn
    st = {}
    Stamps.on = kw.get("stamps", False); Stamps.n = 0; Cfg.pcn = 0
    head = k1_entry()
    P0, P, body = ffn.build_ffn(**kw.get("ffn", {}))
    drop = kw.get("drop", ())
    if drop: body = [i for i in body if not (i.k in drop and (i.k != VALU or '_f32' in i.t.split()[0]))]
    body = body + stamp_dump()
    f = finalize(head + ffn.ffn_pre() + P0 + [wait(lg=0)] + P + body, st)
    print("ffn finalize:", st, "est total", estimate(f), "est body", estimate(finalize(body)), "ninstr", len(f))
    st2 = {}
    ap = attn.build_attn(**kw.get("attn", {}))
    af = finalize(head + ap, st2)[len(finalize(head)):]
    print("attn finalize:", st2, "est", estimate(af), "ninstr", len(af))
    k2p = finalize(k2.build_k2(**kw.get('k2', {})))
    hdr = open("recurrent_scan__linear_attn_block__dense_activation_gelu__prompt.s.ref").read().split("; Override launch")[0]
    out = [hdr.rstrip(),
           f"; @launch kernel={KNAME} grid=(256,1,1) block=(256,1,1) lds=163840",
           f"; @launch kernel=fin_kernel grid=(256,1,1) block=(576,1,1) lds=36864",
           '.amdgcn_target "amdgcn-amd-amdhsa--gfx950"', ".text",
           f".globl {KNAME}", ".p2align 8", f".type {KNAME},@function", f"{KNAME}:",
           text(f), "L_end:", "  s_endpgm", ".p2align 6", "L_attn:", text(af), "  s_endpgm",
           ".globl fin_kernel", ".p2align 8", ".type fin_kernel,@function", "fin_kernel:", text(k2p), "L_end2:", "  s_endpgm", "L_codeend:",
           '.section .rodata,"a"', kd(KNAME, 512, 256), kd("fin_kernel", 152, 152, 64)]
    open(path, "w").write("\n".join(out) + "\n")

if __name__ == "__main__":
    if len(sys.argv) > 2 and sys.argv[2] == "r": Stamps.op = "s_memrealtime"
    build(sys.argv[1] if len(sys.argv) > 1 else "recurrent_scan__linear_attn_block__dense_activation_gelu__prompt.s", stamps=len(sys.argv) > 2)
```

```python
from common import *
import fin, ffn

LOG2E = math.log2(math.e)
OOFF = 32 << 20
WOFF = 36 << 20
GOFF = 40 << 20
vQ1 = [V(2), V(3)]; vQ4 = [V(4), V(5)]
vQ5 = [V(6), V(7)]
vDQ = [V(16), V(17), V(18)]; vDS = [V(19), V(15)]
vCSW = V(13); vCSR = V(14); vZ0 = V(20); vPFW = V(21)
def axf(T, i): return A(32 * ((T >> 2) & 1) + 4 * (2 * (T & 3) + i), 4)
def ACCt(tile, i): return V(64 + 32 * tile + 16 * i, 16) if tile < 5 else A(64 + 32 * (tile - 5) + 16 * i, 16)
CSD = {t: A(128 + 4 * t, 4) for t in range(7)}
ONES = A(156, 4); XEXT = [A(160, 4), A(164, 4)]
RSTD = V(224, 32)
TOFF = {0: 0, 1: 288, 2: 72, 3: 288 + 72}
PITCH = 704
SLOT = 12288
R0B = 8192

def poll(name, off, target):
    v = vX0; s = sT[0]; c = sT[1]
    return [wait(lg=0), valu("v_mov_b32", vX1, 0), salu("s_mov_b32", c, 0),
            raw(f"s_cmp_lg_u32 {sW}, 0", SALU, rd=[sW]), raw(f"s_cbranch_scc1 {name}_x"), label(name),
            I(f"buffer_load_dword {v}, {vX1}, {SRD_DBG}, {sE[0]} offen offset:{off} sc1", OTHER, rd=[vX1]),
            salu("s_add_u32", c, c, 1), raw(f"s_cmp_ge_u32 {c}, 0x200000", SALU, rd=[c]), raw("s_waitcnt vmcnt(0)"),
            raw(f"s_cbranch_scc1 {name}_x"),
            valu("v_readfirstlane_b32", s, v), nop(3),
            raw(f"s_cmp_ge_u32 {s}, {target}", SALU, rd=[s]), raw(f"s_cbranch_scc1 {name}_x"),
            raw("s_sleep 4"), raw(f"s_branch {name}"), label(name + "_x")]
def signal(off, va, vb):
    return [valu("v_lshlrev_b32", va, 12, vTID), valu("v_mov_b32", vb, 1),
            I(f"buffer_atomic_add {vb}, {va}, {SRD_DBG}, {sE[0]} offen offset:{off}", VMST, rd=[vb, va, SRD_DBG, sE[0]])]


def phi_pair(dst, a0, a1, r0, r1, t, raw=None):
    x0, x1, e0, e1 = t[0], t[1], t[2], t[3]
    if a0.p == "a": o = [valu("v_accvgpr_read_b32", x0, a0), valu("v_accvgpr_read_b32", x1, a1), valu("v_mul_f32", x0, x0, r0), valu("v_mul_f32", x1, x1, r1)]
    else: o = [valu("v_mul_f32", x0, a0, r0), valu("v_mul_f32", x1, a1, r1)]
    if raw is not None: o.append(valu("v_cvt_pk_bf16_f32", raw, x0, x1))
    return o + [valu("v_mul_f32", e0, f32(LOG2E), x0), valu("v_mul_f32", e1, f32(LOG2E), x1),
            trans("v_exp_f32_e64", e0, e0, extra="clamp"), trans("v_exp_f32_e64", e1, e1, extra="clamp"),
            valu("v_max_f32", x0, 0, x0), valu("v_max_f32", x1, 0, x1),
            valu("v_add_f32", x0, x0, e0), valu("v_add_f32", x1, x1, e1),
            valu("v_add_f32", x0, f32(1e-6), x0), valu("v_add_f32", x1, f32(1e-6), x1), valu("v_cvt_pk_bf16_f32", dst, x0, x1)]
def cvt_pair(dst, a0, a1, r0, r1, t, raw=None):
    return [valu("v_mul_f32", t[0], a0, r0), valu("v_mul_f32", t[1], a1, r1), valu("v_cvt_pk_bf16_f32", dst, t[0], t[1])]

def build_attn(D=8, BAR=30, BARB=8, dma_pace=2, npre=3, npre2=5, X1=64, X2=32, pfw=200, pause=30, sigdelay=30, GP=4, tlb=True, ctouch=True, drop=(), noq=False, xt=0, verbose=True):
    sHG = sXH
    sM3 = sE[1]
    B = Builder(D, dma_pace, m0b=sM3)
    sXO = [S(46), S(47), S(20), S(21), S(22), S(23), S(60), S(61), S(62)]; sKO = [S(63), S(29)] + [S(70 + i) for i in range(7)]
    l = vLANE
    P = []; a = P.append
    a(salu("s_mul_i32", sB1, sHG, 288)); a(salu("s_mul_i32", sM3, sW, 3072))
    P += rot_table(sXO[:2], sJ8, 9, 128, sXB, sT[1]) + rot_table(sKO[:1], sJ8, 9, 64 * 3456, sB1, sT[1])
    a(valu("v_mov_b32", vT[5], OOB))
    for p_ in range(3):
        a(valu("v_add_u32", vX0, 64 * p_, vLANE))
        a(valu("v_mul_u32_u24", vX1, 1490, vX0)); a(valu("v_lshrrev_b32", vX1, 16, vX1))
        a(valu("v_mul_u32_u24", vX2, 44, vX1)); a(valu("v_sub_u32", vX2, vX0, vX2))
        a(valu("v_mul_u32_u24", vX3, 57, vX2)); a(valu("v_lshrrev_b32", vX3, 10, vX3))
        a(valu("v_mul_u32_u24", vT[0], 1152 - 288, vX3))
        a(valu("v_lshl_add_u32", vT[0], vX2, 4, vT[0])); a(valu("v_add_u32", vT[0], 1152, vT[0]))
        a(valu("v_mul_u32_u24", vT[2], 144, vX2)); a(valu("v_subrev_u32", vT[2], 36 * 144 - 128, vT[2]))
        a(I(f"v_cmp_gt_u32 vcc, 36, {vX2}", VALU, rd=[vX2], wr=["vcc"]))
        a(valu("v_cndmask_b32", vT[0], vT[2], vT[0], "vcc", rd_extra=["vcc"]))
        a(valu("v_mul_u32_u24", vT[1], 3456, vX1))
        a(salu("s_mul_i32", sT[0], sW, 4 * 3456)); a(salu("s_add_u32", sT[0], sT[0], hex(4096 - 1024 * p_)))
        a(valu("v_add3_u32", vT[0], vT[0], vT[1], sT[0]))
        a(I(f"v_cmp_gt_u32 vcc, {36 if noq else 38}, {vX2}", VALU, rd=[vX2], wr=["vcc"]))
        a(valu("v_cndmask_b32", vT[0], vT[5], vT[0], "vcc", rd_extra=["vcc"]))
        a(I(f"v_cmp_gt_u32 vcc, 4, {vX1}", VALU, rd=[vX1], wr=["vcc"]))
        a(valu("v_cndmask_b32", vDQ[p_], vT[5], vT[0], "vcc", rd_extra=["vcc"]))
    a(wait(lg=0))
    P += srd(SRD_X, sP[0:2], SLAB) + srd(SRD_W1, sP[2:4], 1990656 + 4096)
    a(salu("s_sub_u32", SRD_W1[0], SRD_W1[0], 4096)); a(raw(f"s_subb_u32 {SRD_W1[1]}, {SRD_W1[1]}, 0", SALU, rd=[SRD_W1[1]], wr=[SRD_W1[1]]))
    if xt: P += x_touch()
    post = []; a = post.append
    post += srd(SRD_W2, sP[4:6], 663552) + srd(SRD_WS, sP2[2:4], 64 << 20) + srd(SRD_DBG, sP2[0:2], 256)
    post += rot_table(sXO, sJ8, 9, 128, sXB, sT[1]) + rot_table(sKO, sJ8, 9, 64 * 3456, sB1, sT[1])
    if ctouch: post += code_touch()
    post2 = []; a = post2.append
    post2 += [salu("s_mov_b32", sONE, "0x3f803f80"), salu("s_mov_b32", sMASK, "0xffff0000")]
    post2 += x_read_setup(False)
    a(valu("v_bfe_u32", vT[3], l, 2, 2)); a(valu("v_mul_u32_u24", vX0, PITCH, vT[3]))
    a(valu("v_lshrrev_b32", vT[4], 5, l)); a(valu("v_mul_u32_u24", vX1, 6144, vT[4])); a(valu("v_add_u32", vX0, vX0, vX1))
    a(valu("v_and_b32", vX1, 3, l)); a(valu("v_bfe_u32", vX2, l, 4, 1))
    a(valu("v_lshl_add_u32", vX3, vX2, 2, vX1))
    a(salu("s_mul_i32", sT[0], sC2, 144))
    a(valu("v_lshl_add_u32", vQ1[0], vX3, 3, vX0)); a(valu("v_add_u32", vQ1[0], sT[0], vQ1[0]))
    a(valu("v_and_b32", vT[0], 1, l)); a(valu("v_bfe_u32", vT[1], l, 1, 1))
    a(valu("v_mul_u32_u24", vT[2], 288, vT[0])); a(valu("v_mul_u32_u24", vT[1], 72, vT[1]))
    a(salu("s_add_u32", sT[0], sT[0], 64)); a(valu("v_add3_u32", vT[2], vT[2], vT[1], sT[0]))
    a(salu("s_lshl_b32", sT[0], sC2, 4)); a(salu("s_add_u32", sT[0], sT[0], 576))
    a(valu("v_lshl_add_u32", vT[0], vT[0], 3, sT[0]))
    a(I(f"v_cmp_eq_u32 s[58:59], 1, {vX2}", VALU, rd=[vX2], wr=[S(58, 2)]))
    a(valu("v_cndmask_b32", vT[2], vT[2], vT[0], S(58, 2)))
    a(valu("v_add_u32", vQ4[0], vX0, vT[2]))
    a(valu("v_add_u32", vQ1[1], hex(65536), vQ1[0])); a(valu("v_add_u32", vQ4[1], hex(65536), vQ4[0]))
    a(valu("v_lshl_add_u32", vX0, vT[4], 3, vT[3])); a(valu("v_lshlrev_b32", vX0, 8, vX0)); a(valu("v_lshl_add_u32", vX0, vX3, 3, vX0))
    a(salu("s_lshl_b32", sT[0], sC2, 1)); a(valu("v_xor_b32", vX1, sT[0], vT[3]))
    a(valu("v_lshl_add_u32", vQ5[0], vX1, 6, vX0)); a(valu("v_add_u32", vQ5[0], hex(R0B + 4 * SLOT), vQ5[0])); a(valu("v_xor_b32", vQ5[1], 64, vQ5[0]))
    post2 += ones_sel(V(224, 4))
    for j in range(4): a(valu("v_accvgpr_write_b32", ONES[j], V(224 + j)))
    post3 = []; a = post3.append
    a(valu("v_lshrrev_b32", vX0, 4, l)); a(valu("v_bfe_u32", vX1, l, 2, 2)); a(valu("v_xor_b32", vX1, vX1, vX0))
    a(valu("v_lshrrev_b32", vX2, 1, vX1)); a(valu("v_mul_u32_u24", vX2, 144, vX2))
    a(valu("v_and_b32", vX1, 1, vX1)); a(valu("v_lshl_add_u32", vX2, vX1, 6, vX2))
    a(valu("v_and_b32", vX1, 3, l)); a(valu("v_lshl_add_u32", vX2, vX1, 4, vX2))
    a(valu("v_mul_u32_u24", vX0, 3456, vX0))
    a(salu("s_mul_i32", sT[0], sW, 8 * 3456)); a(salu("s_add_u32", sT[0], sT[0], 4096))
    a(valu("v_add3_u32", vDS[0], vX0, vX2, sT[0])); a(valu("v_add_u32", vDS[1], 4 * 3456 - 1024, vDS[0]))
    a(salu("s_lshl_b32", sE[0], sHG, 4))
    a(salu("s_mul_i32", sE[2], sHG, 98304)); a(salu("s_add_u32", sE[2], sE[2], hex(GOFF)))
    a(salu("s_mul_i32", sB2, sHG, 144 * 1152))
    a(valu("v_mov_b32", vZ0, 0))
    a(raw(f"s_cmp_ge_u32 {sRB}, 9", SALU, rd=[sRB])); a(salu("s_cselect_b32", sT[0], 9, 0)); a(salu("s_sub_u32", S(78), sRB, sT[0]))
    a(salu("s_lshl_b32", sT[0], S(78), 7)); a(salu("s_add_u32", sB2, sB2, sT[0]))
    if tlb:
        a(salu("s_mov_b32", sT[2], hex(GOFF + (1 << 20)))); a(touch(vZ0, SRD_WS, sT[2]))
    sFL = S(48)
    fs_, zst = fin.flag_setup(SRD_DBG, V(21), vX0, sFL, [salu("s_add_u32", sT[2], sHG, 12)]); post3 += fs_
    WL = 88 * 1024
    vD2b = [V(248), V(249)]; vD2m = [V(250), V(251)]; vWR = V(252); vWSe = V(253); vWS2e = V(254); sWO = [S(64), S(65)]
    post3 += dma_voff(vD2b, 1152)
    a(I(f"v_cmp_gt_u32 vcc, 64, {vTID}", VALU, rd=[vTID], wr=["vcc"]))
    a(valu("v_cndmask_b32", vD2m[0], vT[5], vD2b[0], "vcc", rd_extra=["vcc"])); a(valu("v_cndmask_b32", vD2m[1], vT[5], vD2b[1], "vcc", rd_extra=["vcc"]))
    a(valu("v_bfe_u32", vX0, vLANE, 2, 2)); a(valu("v_lshrrev_b32", vX1, 4, vLANE))
    a(valu("v_lshl_add_u32", vX2, vX1, 3, vX0)); a(valu("v_lshlrev_b32", vWR, 7, vX2))
    a(valu("v_bfe_u32", vX2, vLANE, 3, 1)); a(valu("v_xor_b32", vX2, sR2, vX2)); a(valu("v_lshl_add_u32", vWR, vX2, 6, vWR))
    a(valu("v_and_b32", vX2, 1, vLANE)); a(valu("v_lshl_add_u32", vWR, vX2, 4, vWR))
    a(valu("v_bfe_u32", vX2, vLANE, 1, 1)); a(valu("v_lshl_add_u32", vWR, vX2, 3, vWR))
    a(salu("s_lshl_b32", sT[0], sC2, 5)); a(salu("s_add_u32", sT[0], sT[0], hex(WL))); a(valu("v_add_u32", vWR, sT[0], vWR))
    a(I(f"v_cmp_gt_u32 vcc, 32, {vLANE}", VALU, rd=[vLANE], wr=["vcc"])); a(valu("v_lshlrev_b32", vWSe, 4, vLANE))
    a(valu("v_cndmask_b32", vWS2e, vT[5], vWSe, "vcc", rd_extra=["vcc"]))
    a(salu("s_lshl_b32", sT[0], S(78), 2)); a(salu("s_add_u32", sT[0], sT[0], sW)); a(salu("s_mul_i32", sT[0], sT[0], 18432))
    a(salu("s_mul_i32", sT[2], sHG, 18 * 256)); a(salu("s_add_u32", sT[0], sT[0], sT[2])); a(salu("s_add_u32", sWO[0], sT[0], hex(WOFF))); a(salu("s_add_u32", sWO[1], sWO[0], 4096))
    a(salu("s_mul_i32", sT[0], sW, 896)); a(salu("s_add_u32", sT[0], sT[0], T_CS))
    a(valu("v_lshl_add_u32", vX0, l, 2, sT[0]))
    a(I(f"v_cmp_gt_u32 vcc, 16, {l}", VALU, rd=[l], wr=["vcc"])); a(valu("v_cndmask_b32", vCSW, vT[5], vX0, "vcc", rd_extra=["vcc"]))
    a(I(f"v_cmp_gt_u32 vcc, 32, {l}", VALU, rd=[l], wr=["vcc"])); a(valu("v_cndmask_b32", vCSR, vT[5], vX0, "vcc", rd_extra=["vcc"]))

    M = B.M
    WEX = V(30, 4)
    cs_last = {}
    for t in range(36):
        u = B.unit(("wkv", t), vDQ, SRD_W1, sKO[t >> 2], (t & 3) * 16 * 3456)
        B.xuse[t] = len(M)
        for tile in (1, 4, 0, 2, 3):
            def mk(av, h, u=u, tile=tile):
                ad = u.addr + h * 3072 + (TOFF[tile] if tile != 4 else 0)
                return ds_tr(av[2 * h:2 * h + 2], (vQ1 if tile != 4 else vQ4)[ad >> 16], ad & 0xffff)
            av = B.next_a(u, mk)
            cs_last[tile] = len(M); B.add(mfma16(CSD[tile], ONES, av, CSD[tile] if t else 0), True, u)
            for i in range(2):
                acc = ACCt(tile, i)
                B.add(mfma32(acc, axf(t, i), av, acc if t else 0), False, u)
    S2 = len(M)
    PK = {"4A": V(192, 16), "4B": V(112, 16), 0: V(64, 16), 1: V(96, 16), 2: V(128, 16), 3: V(160, 16)}
    PD = {"01": A(168, 16), "04": A(184, 16), "41": A(200, 16), "44": V(80, 16), "23": A(216, 16), "24": A(232, 16), "43": V(208, 16)}
    def prod(name, ta, tb):
        return [mfma32(PD[name], PK[ta][4 * k:4 * k + 4], PK[tb][4 * k:4 * k + 4], PD[name] if k else 0) for k in range(4)]
    m1 = prod("41", "4A", 1) + prod("01", 0, 1) + prod("04", 0, "4B") + prod("44", "4A", "4B")
    m2 = prod("23", 2, 3) + prod("24", 2, "4B") + prod("43", "4A", 3)
    pos = {}; ext_at = {}
    for tile in (1, 4, 0, 2, 3):
        ext_at[tile] = len(M)
        for i in range(2): B.add(mfma32(ACCt(tile, i), XEXT[i], WEX, ACCt(tile, i)))
    pool2 = LDSAlloc([])
    Q0B = R0B + 4 * SLOT
    for t in range(36):
        if t == X1 // 4:
            pos["m1"] = len(M)
            for m in m1: B.add(m)
        if t == X1 // 4 + X2 // 4:
            pos["m2"] = len(M)
            for m in m2: B.add(m)
            pos["m2e"] = len(M) - 1
        u = B.unit(("wq", t >> 1), vDS, SRD_W1, sKO[t >> 2], ((t >> 1) & 1) * 32 * 3456, sM0B); u.pool = pool2
        B.xuse[36 + t] = len(M)
        for tile in (5, 6):
            def mk(av, h, u=u, tile=tile, t=t):
                return ds_tr(av[2 * h:2 * h + 2], vQ5[tile - 5], u.addr - Q0B + (t & 1) * 4096 + h * 1024)
            av = B.next_a(u, mk)
            cs_last[tile] = len(M); B.add(mfma16(CSD[tile], ONES, av, CSD[tile] if t else 0), True, u)
            for i in range(2):
                acc = ACCt(tile, i)
                B.add(mfma32(acc, axf(36 + t, i), av, acc if t else 0), False, u)
    bars = list(range(BAR - D - 1, S2 - 4, BAR)) + list(range(S2 + 1, len(M), BARB))
    CB = [V(224, 16), V(224, 16)]; S4 = V(240, 4); Q4 = V(244, 4)
    B.x_units(sXO, axf, 2, CB, nblk=3, blk0=1)
    B.dma_pace = lambda g: 1 if g < 60 else dma_pace
    WF = A(168, 20); wrd = []
    wu = [B.unit(("wo", k), vD2b if k < 2 else vD2m, SRD_W2, sB2, k * 64 * 1152, m0b=sM0B, fixed=WL + k * 8192) for k in range(3)]
    for m in range(5):
        for h in range(2): wrd.append(B.xread(wu[2], pfw + 2 * m + h, ds_tr(WF[4 * m + 2 * h:4 * m + 2 * h + 2], vWR, m * 4096 + h * 512), "wfr"))
    wu[0].first_read = pfw - 2; wu[1].first_read = pfw - 1
    sc = B.make_sched(bars, [R0B + SLOT * k for k in range(6)])
    def wrel(g, done=[False]):
        if not done[0] and all(r.pub is not None for r in wrd):
            done[0] = True; B.ring.put(R0B + SLOT * 6); pool2.put(BLK); pool2.put(BLK + 8192)
    sc.on_bar.append(wrel)
    u1 = [u for u in B.units if u.name[0] == "wkv"]
    B.retire = lambda addr, g: all(u.addr is not None for u in u1)
    given = set()
    def carve(g):
        if all(u.addr is not None for u in u1):
            for x in list(B.ring.free): B.ring.free.remove(x); B.retired[x] = g
        for j in range(5):
            lo = Q0B + 8192 * j; hi = lo + 8192
            need_ = [R0B + SLOT * k for k in range(7) if R0B + SLOT * k < hi and R0B + SLOT * (k + 1) > lo]
            if j not in given and all(x in B.retired for x in need_): given.add(j); pool2.put(lo)
    sc.on_bar.append(carve)
    for _ in range(npre): P += B.next_dma()
    P += post
    for _ in range(2): P += B.next_dma()
    P += post2
    for _ in range(npre2 - npre - 2): P += B.next_dma()
    P += stamp()
    P += B.first_barrier()
    pub = lambda it, g: sc.to_publish.append(it)
    P3 = seq(post3, 2, 20, 110, "p3")
    B.stats_batches(CB, S4, Q4, [B.xuse[4 * U] + 8 for U in range(9)])
    wu[0].cond = lambda g: P3[-1].gap is not None and P3[-1].gap < g
    wst = [buf_st(WF[4 * m:4 * m + 4], vWSe, SRD_WS, sWO[0], off=1024 * m, aux="sc1") for m in range(4)] + [buf_st(WF[16:20], vWS2e, SRD_WS, sWO[1], aux="sc1")]
    WS_ = [item(x, earliest=pfw + 14 + 6 * k, deadline=pfw + 16 + 6 * k, name="wst") for k, x in enumerate(wst)]
    gbw = min(x for x in bars if x > pfw + 90)
    WS_.append(item(wait_ops(vm_ops=wst + [zst]), earliest=gbw - 1, deadline=gbw - 1, name="wsw"))
    x2_ = [salu("s_lshl_b32", sT[0], sRB, 2)] + fin.dbg_add(SRD_DBG, sT[0], 0, V(248), V(249)) + fin.dbg_add(SRD_DBG, 0, fin.DB_WOF, V(248), V(249))[2:]
    WS_ += seq(x2_, gbw, gbw + 1, gbw + 2, "wsig")
    sc.add(Stream("wof", WS_))
    e0 = B.xuse[32] + 9
    BX = V(248, 4); rho = V(252)
    sf = stats_finish(S4, Q4, BX, rho, None, [vT[2], vT[3]])
    sf += [valu("v_lshlrev_b32", vT[2], 4, vTID), valu("v_and_b32", vT[3], 31, vLANE), salu("s_lshl_b32", sT[0], sW, 7), valu("v_lshl_add_u32", vT[3], vT[3], 2, sT[0])]
    SF = seq(sf, e0, e0 + 2, e0 + 10, "sf")
    wr = [item(ds_wr(vT[2], BX, T_BX), deadline=e0 + 11, name="bxw"), item(ds_wr(vT[3], rho, T_RHO), deadline=e0 + 11, name="rhow")]
    for w in wr: w.on_emit = pub
    ad2 = [salu("s_lshl_b32", sT[0], sC2, 10), valu("v_subrev_u32", vT[2], sT[0], vT[2]),
           valu("v_lshrrev_b32", vT[3], 5, vLANE), salu("s_lshl_b32", sT[0], sR2, 8), valu("v_lshl_add_u32", vT[3], vT[3], 4, sT[0]),
           valu("v_mov_b32", WEX[2], 0), valu("v_mov_b32", WEX[3], 0)]
    AD2 = seq(ad2, 0, e0 + 12, e0 + 13, "ad2")
    rd = [item(ds_rd(XEXT[i], vT[2], T_BX + 1024 * i), deadline=S2 - 8, name="bxr") for i in range(2)]
    rd += [item(ds_rd(RSTD[4 * j:4 * j + 4], vT[3], T_RHO + 32 * j), deadline=S2 - 6, name="rsr") for j in range(8)]
    rd[0].cond = lambda g: all(w.pub is not None for w in wr)
    B.need(S2, rd)
    sc.add(Stream("setup", P3 + SF + wr + AD2 + rd))
    def cs_w(tile):
        d = CSD[tile]
        return I(f"ds_write2_b32 {vCSW}, {d[0]}, {d[1]} offset0:{32*tile} offset1:{32*tile+16}", LDSW, rd=[vCSW, d[0], d[1]], cost=2)
    def wex(c): return [valu("v_cvt_pk_bf16_f32", WEX[0], c, c), valu("v_and_b32", WEX[1], sMASK, WEX[0]), valu("v_sub_f32", c, c, WEX[1]), valu("v_cvt_pk_bf16_f32", WEX[1], c, 0)]
    CSV = {1: vT[0], 4: vT[1], 0: vT[4], 2: vX1, 3: vX2}
    CS1 = []; CS2 = []
    for tile in (1, 4, 0, 2, 3):
        e = cs_last[tile] + 3
        CS1.append(item(cs_w(tile), earliest=e, deadline=e, name="csw"))
        CS1.append(item(ds_rd(CSV[tile], vCSR, 128 * tile), earliest=e + 1, deadline=e + 1, name="csr"))
        BL = [item(x, earliest=ext_at[tile] - 1, deadline=ext_at[tile] - 1, name="wex") for x in wex(CSV[tile])]
        BL[0].cond = lambda g, r=CS1[-1]: r.gap is not None
        CS2 += BL; B.need(ext_at[tile], BL)
    sc.add(Stream("cs1", CS1)); sc.add(Stream("cs2", CS2))
    tmp = [V(34), V(35), V(38), V(39)]; tmp2 = [V(40), V(41), V(42), V(8)]
    def ep_tile(name, tile, fn, raw=None):
        o = []
        for i in range(2):
            for j in range(0, 8, 2):
                ac = ACCt(tile, i); rs = RSTD[16 * i:16 * i + 16]
                x = fn(PK[name][8 * i + j], ac[2 * j], ac[2 * j + 1], rs[2 * j], rs[2 * j + 1], tmp, raw and raw[8 * i + j])
                y = fn(PK[name][8 * i + j + 1], ac[2 * j + 2], ac[2 * j + 3], rs[2 * j + 2], rs[2 * j + 3], tmp2, raw and raw[8 * i + j + 1])
                for p_, q_ in zip(x, y): o += [p_, q_]
        return o
    e1 = [valu("v_mov_b32", vX3, "0x3f803f80")] + ep_tile(1, 1, cvt_pair) + ep_tile("4A", 4, phi_pair, PK["4B"])
    e1 += [valu("v_cndmask_b32", PK["4B"][j], PK["4B"][j], vX3, S(58, 2)) for j in range(16)]
    e1 += ep_tile(0, 0, phi_pair)
    e2 = ep_tile(2, 2, phi_pair) + ep_tile(3, 3, cvt_pair)
    def spread(ins, g0, g1, name):
        tot = sum(i.cost for i in ins); c = 0; out = []
        for i in ins:
            c += i.cost
            out.append(item(i, earliest=g0, deadline=g0 + int((g1 - g0) * c / tot), name=name))
        return out
    E1 = spread(e1, S2 + 9, pos["m1"] + 2, "e1")
    E2 = spread(e2, pos["m1"] + 3, pos["m2"] - 2, "e2")
    n4 = 1 + 48 + 16 * 14
    B.need(pos["m1"], [E1[n4 - 1]]); B.need(pos["m1"] + 4, E1[-1:]); B.need(pos["m2"], E2[-1:])
    ad = []; b = ad.append
    vK0, vK1, vK2, vK3, vK4, vK5 = [V(144 + i) for i in range(6)]
    n_ = V(34); g_ = V(35); x2 = V(38); e_ = V(39); j_ = V(40); t3 = V(41)
    b(valu("v_and_b32", n_, 31, vLANE)); b(valu("v_lshrrev_b32", g_, 5, vLANE))
    b(salu("s_mul_i32", sT[0], sR2, 23680)); b(salu("s_mul_i32", sT[1], sC2, 11840)); b(salu("s_add_u32", sT[0], sT[0], sT[1]))
    b(salu("s_mul_i32", sT[2], sW, 5920))
    b(salu("s_mul_i32", sT[3], sR2, 96 * 176)); b(salu("s_mul_i32", sT[4], sC2, 48 * 176 + 72)); b(salu("s_add_u32", sT[3], sT[3], sT[4]))
    b(salu("s_mul_i32", sE[3], sW, 1536)); b(salu("s_add_u32", sE[2], sE[3], sE[2]))
    b(salu("s_mul_i32", sE[3], sRB, 6144)); b(salu("s_add_u32", sE[3], sE[3], sE[2]))
    b(valu("v_mul_u32_u24", vK0, 160, n_)); b(valu("v_lshl_add_u32", vK0, g_, 4, vK0)); b(valu("v_add_u32", vK0, sT[0], vK0))
    b(valu("v_mov_b32", vX3, OOB))
    b(valu("v_add_u32", vK2, 20 * 160, vK0))
    b(valu("v_subrev_u32", x2, 12, n_)); b(I(f"v_cmp_gt_u32 vcc, 5, {x2}", VALU, rd=[x2], wr=["vcc"]))
    b(valu("v_add_u32", vK1, 28 * 160, vK0))
    b(valu("v_subrev_u32", x2, 4, n_))
    b(valu("v_cndmask_b32", vK2, vX3, vK2, "vcc", rd_extra=["vcc"]))
    b(I(f"v_cmp_gt_u32 vcc, 4, {x2}", VALU, rd=[x2], wr=["vcc"]))
    b(valu("v_cndmask_b32", vK1, vX3, vK1, "vcc", rd_extra=["vcc"]))
    b(I(f"v_cmp_eq_u32 vcc, 16, {n_}", VALU, rd=[n_], wr=["vcc"]))
    b(valu("v_cndmask_b32", vK1, vK1, vK2, "vcc", rd_extra=["vcc"]))
    b(I(f"v_cmp_gt_u32 vcc, 32, {vLANE}", VALU, rd=[vLANE], wr=["vcc"]))
    b(valu("v_cndmask_b32", vK3, vX3, vK0, "vcc", rd_extra=["vcc"]))
    b(valu("v_cndmask_b32", vK4, vX3, vK1, "vcc", rd_extra=["vcc"]))
    b(valu("v_cndmask_b32", vK5, vX3, vK2, "vcc", rd_extra=["vcc"]))
    vS = [[V(150 + 2 * p_ + hp) for hp in range(2)] for p_ in range(3)]
    vAMa = [V(26 + p_) for p_ in range(3)]; vAMz = V(29); vG = [V(20), V(21)]
    for p_ in range(3):
        dp_ = x2
        b(valu("v_add_u32", e_, 64 * p_, vLANE))
        b(valu("v_mul_u32_u24", j_, 57, e_)); b(valu("v_lshrrev_b32", j_, 9, j_))
        b(valu("v_mul_u32_u24", dp_, 9, j_)); b(valu("v_sub_u32", dp_, e_, dp_))
        b(valu("v_mul_u32_u24", vS[p_][0], 160, j_)); b(valu("v_lshl_add_u32", vS[p_][0], dp_, 3, vS[p_][0])); b(valu("v_add_u32", vS[p_][0], sT[2], vS[p_][0]))
        b(valu("v_add_u32", vS[p_][1], 18 * 160 + 72, vS[p_][0]))
        b(valu("v_mul_u32_u24", vAMa[p_], 176, j_)); b(valu("v_lshl_add_u32", vAMa[p_], dp_, 2, vAMa[p_])); b(valu("v_add_u32", vAMa[p_], sT[3], vAMa[p_]))
        if p_ == 2:
            b(valu("v_add_u32", t3, 18 * 160, vS[p_][0]))
            b(I(f"v_cmp_eq_u32 vcc, 18, {j_}", VALU, rd=[j_], wr=["vcc"]))
            b(valu("v_cndmask_b32", vS[p_][0], vS[p_][0], t3, "vcc", rd_extra=["vcc"]))
            b(valu("v_add_u32", t3, 4 * 176, vAMa[p_]))
            b(valu("v_cndmask_b32", vAMz, vX3, t3, "vcc", rd_extra=["vcc"]))
            b(I(f"v_cmp_gt_u32 vcc, 19, {j_}", VALU, rd=[j_], wr=["vcc"]))
            b(valu("v_lshlrev_b32", vG[0], 4, vLANE)); b(valu("v_lshlrev_b32", vG[1], 3, vLANE))
            b(valu("v_cndmask_b32", vAMa[p_], vX3, vAMa[p_], "vcc", rd_extra=["vcc"]))
            b(valu("v_cndmask_b32", vS[p_][0], vLANE, vS[p_][0], "vcc", rd_extra=["vcc"]))
            b(valu("v_cndmask_b32", vS[p_][1], vLANE, vS[p_][1], "vcc", rd_extra=["vcc"]))
            b(valu("v_and_b32", vS[p_][0], -8, vS[p_][0])); b(valu("v_and_b32", vS[p_][1], -8, vS[p_][1]))
    AD = seq(ad, pos["m2"] - 1, pos["m2"], pos["m2"] + 6, "ad")
    KVT = R0B
    kw = []
    for j in range(4):
        kw.append(ds_wr(vK0, PD["01"][4 * j:4 * j + 4], KVT + 32 * j)); kw.append(ds_wr(vK1, PD["04"][4 * j:4 * j + 4], KVT + 32 * j))
    kw.append(ds_wr(vK3, PD["41"][0:4], KVT + 128)); kw.append(ds_wr(vK4, PD["44"][0:4], KVT + 128)); kw.append(ds_wr(vK5, PD["44"][4:8], KVT + 5920 + 128))
    nk1 = len(kw)
    for j in range(4): kw.append(ds_wr(vK0, PD["23"][4 * j:4 * j + 4], KVT + 5920 + 32 * j))
    for j in range(4): kw.append(ds_wr(vK2, PD["24"][4 * j:4 * j + 4], KVT + 5920 + 32 * j))
    kw.append(ds_wr(vK3, PD["43"][4:8], KVT + 5920 + 128))
    KW = []
    for k, ins in enumerate(kw):
        e = pos["m2"] + 7 if k < nk1 else pos["m2"] + 5 + 4 * min(2, (k - nk1) // 4)
        it = item(ins, earliest=e, deadline=max(e, pos["m2"] + 7 + (7 * k) // len(kw)), name=f"kw{k}"); it.on_emit = pub; KW.append(it)
    KW[0].cond = lambda g: all(R0B + SLOT * k in B.retired for k in range(4))
    bk = pos["m2e"] + 5
    sc.bars.add(bk)
    R0 = V(64, 12); R1 = V(96, 12)
    CP = []
    for hp in range(2):
        for p_ in range(3):
            k = 2 * (3 * hp + p_)
            CP.append(item(ds_rd(R0[k:k + 2], vS[p_][hp], KVT), deadline=bk + 1, name="cr")); CP.append(item(ds_rd(R1[k:k + 2], vS[p_][hp], KVT + 23680), deadline=bk + 1, name="cr"))
    for it in CP: it.on_emit = pub
    CR = list(CP)
    CP[0].cond = lambda g: all(w.pub is not None for w in KW)
    for k in range(12): CP.append(item(valu("v_add_f32", R0[k], R0[k], R1[k]), earliest=bk + 3, deadline=bk + 4, name="cadd"))
    for k in range(6): CP.append(item(valu("v_cvt_pk_bf16_f32", R0[k], R0[2 * k], R0[2 * k + 1]), deadline=bk + 4, name="ccvt"))
    ats = [buf_st(R0[0:4], vG[0], SRD_WS, sE[3], aux="sc1"), buf_st(R0[4:6], vG[1], SRD_WS, sE[3], off=1024, aux="sc1")]
    for ins in ats: CP.append(item(ins, deadline=bk + 5, name="kvst"))
    for ins in stamp(): sc.fix(S2 - 1, Item(lambda ins=ins: [ins], PRE, 1))
    gw = min([x for x in sorted(sc.bars) if x >= bk + 9 + sigdelay]) - 1
    wv = item(wait_ops(vm_ops=ats), earliest=gw, deadline=gw, name="atwait"); CP.append(wv)
    sg = signal(128, V(156), V(157))
    CP.append(item(sg[0], earliest=gw, deadline=gw, name="sg")); CP.append(item(sg[1], earliest=gw, deadline=gw, name="sg"))
    CP.append(item(sg[2], earliest=gw + 1, deadline=gw + 1, name="sig"))
    AM = R0B; OIM = R0B; PQ = BLK + 16384
    Z = V(176, 4)
    ZF = [item(valu("v_lshlrev_b32", V(158), 4, vTID), earliest=gw + 2, name="zf")] + [item(valu("v_mov_b32", Z[j], 0), name="zf") for j in range(4)]
    zw = [item(ds_wr(V(158), Z, AM + 4096 * k), name="zf") for k in range(9)]
    zw[0].cond = lambda g: all(r.pub is not None for r in CR)
    tl = []; a = tl.append
    vPW = V(180); vPW4 = V(181); vPR = V(182); vAR = V(183); vOW = V(184); vOW2 = V(186); vWS = V(171); vWS2 = V(172); vOP = V(173)
    n_ = vX0; g_ = vX1
    a(valu("v_and_b32", n_, 31, vLANE)); a(valu("v_lshrrev_b32", g_, 5, vLANE))
    a(salu("s_mul_i32", sT[0], sW, 80 * 136)); a(salu("s_add_u32", sT[0], sT[0], hex(PQ)))
    a(valu("v_mul_u32_u24", vPW, 136, n_)); a(valu("v_lshl_add_u32", vPW, g_, 3, vPW)); a(valu("v_add_u32", vPW, sT[0], vPW))
    a(valu("v_add_u32", vPW4, 48 * 136, vPW))
    a(valu("v_cndmask_b32", vPW4, vX3, vPW4, S(58, 2)))
    a(valu("v_bfe_u32", vX2, vLANE, 2, 2)); a(valu("v_lshl_add_u32", vX2, g_, 3, vX2)); a(valu("v_mul_u32_u24", vPR, 136, vX2))
    a(valu("v_and_b32", vX2, 3, vLANE)); a(valu("v_lshl_add_u32", vPR, vX2, 3, vPR))
    a(valu("v_bfe_u32", vX2, vLANE, 4, 1)); a(valu("v_lshl_add_u32", vPR, vX2, 5, vPR)); a(valu("v_add_u32", vPR, sT[0], vPR))
    a(salu("s_mul_i32", sT[0], sC2, 96 * 176))
    a(valu("v_mul_u32_u24", vAR, 176, n_)); a(valu("v_lshl_add_u32", vAR, g_, 4, vAR)); a(valu("v_add_u32", vAR, sT[0], vAR))
    a(salu("s_mul_i32", sT[0], sR2, 64 * 304))
    a(valu("v_mul_u32_u24", vX2, 304, n_)); a(valu("v_add_u32", vX2, sT[0], vX2))
    a(salu("s_mul_i32", sT[0], sC2, 144)); a(valu("v_lshl_add_u32", vOW, g_, 3, vX2)); a(valu("v_add_u32", vOW, sT[0], vOW))
    a(I(f"v_cmp_gt_u32 vcc, 32, {vLANE}", VALU, rd=[vLANE], wr=["vcc"]))
    a(valu("v_lshlrev_b32", vWS, 4, vLANE))
    a(valu("v_cndmask_b32", vOW2, vX3, vOW, "vcc", rd_extra=["vcc"]))
    a(valu("v_cndmask_b32", vWS2, vX3, vWS, "vcc", rd_extra=["vcc"]))
    for i in range(2): a(valu("v_add_u32", V(168 + i), hex(OIM + i * 32 * 304), vOW))
    a(valu("v_lshrrev_b32", vX1, 4, vLANE))
    a(valu("v_and_b32", vX0, 15, vLANE)); a(valu("v_mul_u32_u24", vX0, 304, vX0)); a(valu("v_lshl_add_u32", vX0, vX1, 4, vX0))
    a(salu("s_mul_i32", sT[0], sW, 32 * 304)); a(valu("v_add_u32", vOP, sT[0], vX0))
    sOO = [S(66), S(67), S(68), S(69)]
    a(salu("s_mul_i32", sT[2], sHG, 18 * 256))
    a(salu("s_lshl_b32", sT[0], sRB, 2)); a(salu("s_add_u32", sT[0], sT[0], sW)); a(salu("s_mul_i32", sT[0], sT[0], 36864))
    a(salu("s_add_u32", sT[0], sT[0], sT[2])); a(salu("s_add_u32", sOO[0], sT[0], hex(OOFF)))
    a(salu("s_add_u32", sOO[1], sOO[0], 4096)); a(salu("s_add_u32", sOO[2], sOO[0], 18432)); a(salu("s_add_u32", sOO[3], sOO[0], 18432 + 4096))
    TL = seq(tl, gw + 2, len(M) - 30, len(M) - 4, "tl")
    sc.add(Stream("ep", E1 + E2 + AD + KW + CP + ZF + zw + TL))
    body = B.finish(P, "ATTN-G1", verbose)
    assert wv.gap == gw and CP[-1].gap == gw + 1, (wv.gap, gw)
    E = []; a = E.append
    E += stamp()
    for tile in (5, 6): a(cs_w(tile))
    for tile in (5, 6): a(ds_rd(vT[tile - 5], vCSR, 128 * tile))
    a(wait(lg=0)); a(bar())
    for tile in (5, 6):
        E += wex(vT[tile - 5])
        for i in range(2): a(mfma32(ACCt(tile, i), XEXT[i], WEX, ACCt(tile, i)))
    def pq_writes(src, addr, doff):
        return [ds_wr(addr, src[8 * i + 2 * j:8 * i + 2 * j + 2], doff * 136 + 64 * i + 16 * j) for i in range(2) for j in range(4)]
    E += pq_writes(PK["4A"], vPW4, 0)
    PK[5] = V(112, 16); PK[6] = V(128, 16)
    def qpart(tile, doff):
        et = ep_tile(tile, tile, phi_pair); pw = pq_writes(PK[tile], vPW, doff)
        n = len(et) // 4
        return [et[k * n:(k + 1) * n] + pw[2 * k:2 * k + 2] for k in range(4)]
    parts = qpart(5, 0) + qpart(6, 32)
    for k in range(GP): E += parts[k]
    E += poll("L_pd", 128, 16)
    a(bar())
    GLr = [V(64 + 6 * k, 6) for k in range(8)] + [V(144 + 6 * k, 6) for k in range(4)] + [V(188 + 6 * k, 6) for k in range(4)]
    a(salu("s_mov_b32", sT[0], sRB))
    gls = []
    for k in range(16):
        r = GLr[k]; so = sSO[k & 1]
        gls.append([salu("s_mul_i32", so, sT[0], 6144), salu("s_add_u32", so, so, sE[2]),
                    buf_ld(r[0:4], vG[0], SRD_WS, so, aux="sc1"), buf_ld(r[4:6], vG[1], SRD_WS, so, off=1024, aux="sc1"),
                    salu("s_add_u32", sT[0], sT[0], 1), salu("s_and_b32", sT[0], sT[0], 15)])
    rest = parts[GP:]
    per = -(-16 // max(1, min(3, len(rest))))
    gi = 0
    for pt in rest + [[]]:
        for g_i in gls[gi:gi + per]: E += g_i
        gi += per
        E += pt
    for g_i in gls[gi:]: E += g_i
    QF = lambda t, i: A(24 + 4 * (2 * t + i), 4)
    for t in range(5):
        for i in range(2):
            for h in range(2): a(ds_tr(QF(t, i)[2 * h:2 * h + 2], vPR, (16 * t + 4 * h) * 136 + 64 * i))
    R0 = V(212, 12)
    a(salu("s_mov_b32", sT[2], "0x00003f80")); a(salu("s_mov_b32", sT[3], "0x3f800000"))
    for k, r in enumerate(GLr):
        for j in range(6):
            a(valu("v_dot2_f32_bf16", R0[2 * j], r[j], sT[2], R0[2 * j] if k else 0))
            a(valu("v_dot2_f32_bf16", R0[2 * j + 1], r[j], sT[3], R0[2 * j + 1] if k else 0))
    for k in range(0, 12, 2): a(valu("v_cvt_pk_bf16_f32", R0[k], R0[k], R0[k + 1]))
    for hp in range(2):
        for p_ in range(3):
            k = 2 * (3 * hp + p_)
            a(ds_wr(vAMa[p_], R0[k], AM + hp * (24 * 176 + 36)))
            if p_ == 2: a(ds_wr(vAMz, R0[k], AM + hp * (24 * 176 + 36)))
    a(wait(lg=0)); a(bar())
    AF = lambda tau, k: V(116 + 4 * (3 * tau + k), 4)
    for tau in range(3):
        for k in range(3): a(ds_rd(AF(tau, k), vAR, AM + tau * 32 * 176 + (tau + k) * 32))
    NV = [V(64, 48), None]
    ND1 = [V(152, 16), V(188, 16), V(44, 16)]
    def nvr(i, r): return NV[0][r] if i == 0 else ND1[r // 16][r % 16]
    mm = {0: [], 1: []}
    for i in range(2):
        for tau in range(3):
            d = NV[0][16 * tau:16 * tau + 16] if i == 0 else ND1[tau]
            for k in range(3): mm[i].append(mfma32(d, AF(tau, k), QF(tau + k, i), d if k else 0))
    def oep(i):
        o = []; w = []
        for hl in range(4): o.append(valu("v_add_f32", nvr(i, 12 * hl + 10), f32(1e-6), nvr(i, 12 * hl + 10)))
        for hl in range(4): o.append(trans("v_rcp_f32", nvr(i, 12 * hl + 10), nvr(i, 12 * hl + 10)))
        for hl in range(4):
            for r in range(10): o.append(valu("v_mul_f32", nvr(i, 12 * hl + r), nvr(i, 12 * hl + r), nvr(i, 12 * hl + 10)))
            for r in range(5): o.append(valu("v_cvt_pk_bf16_f32", nvr(i, 12 * hl + r), nvr(i, 12 * hl + 2 * r), nvr(i, 12 * hl + 2 * r + 1)))
        va = V(168 + i)
        for hl in range(4):
            for grp in range(2):
                o0 = (36 * hl + 16 * grp) // 4
                d0, d1 = nvr(i, 12 * hl + 2 * grp), nvr(i, 12 * hl + 2 * grp + 1)
                w.append(I(f"ds_write2_b32 {va}, {d0}, {d1} offset0:{o0} offset1:{o0+1}", LDSW, rd=[va, d0, d1], cost=3))
            w.append(ds_wr(vOW2, nvr(i, 12 * hl + 4), OIM + i * 32 * 304 + 36 * hl + 32))
        return o, w
    E += mm[0]
    a(wait(lg=0)); a(bar())
    o0_, w0_ = oep(0); o1_, w1_ = oep(1)
    E += mm[1][:2]
    k = 0
    for m in mm[1][2:]:
        a(m); E += o0_[k:k + 10]; k += 10
    E += o0_[k:] + w0_ + o1_ + w1_
    a(wait(lg=0))
    a(bar())
    OP = V(64, 40)
    for nt in range(2):
        for m in range(5): a(ds_rd(OP[20 * nt + 4 * m:20 * nt + 4 * m + 4], vOP, OIM + nt * 16 * 304 + m * 64))
    ost = []
    for nt in range(2):
        for m in range(4): ost.append(buf_st(OP[20 * nt + 4 * m:20 * nt + 4 * m + 4], vWS, SRD_WS, sOO[2 * nt], off=1024 * m, aux="sc1"))
        ost.append(buf_st(OP[20 * nt + 16:20 * nt + 20], vWS2, SRD_WS, sOO[2 * nt + 1], aux="sc1"))
    E += ost
    E += stamp()
    a(salu("s_add_u32", fin.sK, sHG, 12))
    fa, _ = fin.flag_setup(SRD_DBG, V(43), vX0, sFL, [salu("s_mov_b32", sT[2], fin.sK)])
    E += fa[:-2]
    E += [wait_ops(vm_ops=ost), bar()] + fin.flag_store(1, V(43), vX0, sFL)
    return P + body + E + stamp_dump()
```

```python
from fw import *
from sched import *
import struct, math
def f32(x): return "0x%08x" % struct.unpack("<I", struct.pack("<f", x))[0]

SLAB = 2359296
sKA = S(0, 2); sWG = S(2)
SRD_X = S(4, 4); SRD_W1 = S(8, 4); SRD_W2 = S(12, 4); SRD_WS = S(16, 4); SRD_B = S(20, 4); SRD_DBG = S(24, 4)
sRB = S(28); sFS = S(29); sW = S(30); sR2 = S(31); sC2 = S(32); sJ8 = S(33)
sT = [S(34 + i) for i in range(6)]
sXB = S(40); sB1 = S(41); sB2 = S(42)
sM0B = S(43)
sSO = [S(44), S(45)]
sSTB = S(46); sST = [S(47), S(48)]
sC1 = S(49); sONE = S(50); sMASK = S(51); sROLE = S(52); sXH = S(53)
sE = [S(54 + i) for i in range(10)]
sP = S(64, 16); sP2 = S(80, 4)
def rot_table(dsts, rot, n, mul, base, tmp):
    p = [salu("s_mov_b32", tmp, rot)]
    for i in range(len(dsts)):
        p.append(salu("s_mul_i32", dsts[i], tmp, hex(mul)))
        if base is not None: p.append(salu("s_add_u32", dsts[i], dsts[i], base))
        if i + 1 < len(dsts):
            p.append(salu("s_add_u32", tmp, tmp, 1))
            p.append(raw(f"s_cmp_ge_u32 {tmp}, {n}", SALU, rd=[tmp]))
            p.append(salu("s_cselect_b32", tmp, 0, tmp))
    return p
UNIT = 8192

def srd(dst, ptr, nbytes):
    return [salu("s_mov_b32", dst[0], ptr[0]), salu("s_mov_b32", dst[1], ptr[1]),
            salu("s_mov_b32", dst[2], hex(nbytes)), salu("s_mov_b32", dst[3], "0x00020000")]

STAMP_REGS = [100, 84, 86, 88, 90, 92, 94, 96, 68, 70, 98, 72]
class Cfg:
    fst = False
    wofaux = 'sc1'
    pcn = 0
    kname = 'recurrent_scan__linear_attn_block__dense_activation_gelu__prompt_kernel'
    staux = 'sc1'
class Stamps:
    on = False
    op = 's_memtime'
    n = 0
def stamp():
    if not Stamps.on: return []
    r = STAMP_REGS[Stamps.n]; Stamps.n += 1
    return [I(f"{Stamps.op} s[{r}:{r+1}]", SMEM, wr=[S(r, 2)])]
def rstamp(k):
    if not Stamps.on: return []
    r = STAMP_REGS[k]
    return [I(f"s_memrealtime s[{r}:{r+1}]", SMEM, wr=[S(r, 2)])]
def stamp_dump():
    if not Stamps.on: return []
    Stamps.n = 9
    p = [wait(vm=0, lg=0)] + stamp() + rstamp(11) + [wait(lg=0)]
    for k in range(12):
        p.append(valu("v_mov_b32", V(64 + k), S(STAMP_REGS[k])))
    t = sT[0]
    p.append(salu("s_lshl_b32", t, S(2), 2)); p.append(salu("s_add_u32", t, t, sW)); p.append(salu("s_lshl_b32", t, t, 6))
    p.append(salu("s_add_u32", t, t, hex(48 << 20)))
    p.append(valu("v_mov_b32", V(63), 0))
    p.append(raw("s_mov_b64 exec, 1", SALU))
    for k in range(0, 12, 4):
        p.append(buf_st(V(64 + k, 4), V(63), SRD_WS, t, off=4 * k))
    Stamps.n = 1
    return p

vTID = V(0); vLANE = V(1)
vX0 = V(8)
vXR = [V(9 + i) for i in range(4)]
vXD = [V(22 + i) for i in range(4)]
vXO = [V(26 + i) for i in range(4)]
vT = [V(34 + i) for i in range(6)]
vX1 = V(41); vX2 = V(42); vX3 = V(43)
NA = 5
vA = [V(44 + 4 * i, 4) for i in range(NA)]
vDUM = V(40)
BLK = 96 * 1024
OOB = "0x7ff00000"
sM4 = S(3)
T_BX = 0
T_RHO = 4096
T_CS = 4608

def entry_lane_setup():
    p = []; a = p.append
    a(valu("v_and_b32", vLANE, 63, vTID))
    a(valu("v_and_b32", vX0, 7, vTID))
    a(valu("v_bfe_u32", vX1, vTID, 3, 3))
    a(valu("v_lshrrev_b32", vX3, 6, vTID))
    a(valu("v_lshl_add_u32", vX2, vX3, 5, vX1))
    a(valu("v_mul_u32_u24", vX2, 1152, vX2))
    a(valu("v_bfe_u32", vX1, vTID, 4, 2))
    a(valu("v_xor_b32", vX0, vX0, vX1))
    a(valu("v_lshl_add_u32", vXD[0], vX0, 4, vX2))
    a(valu("v_xor_b32", vX0, 4, vX0))
    a(valu("v_lshl_add_u32", vXD[1], vX0, 4, vX2))
    a(valu("v_add_u32", vXD[1], 9216 - 1024, vXD[1]))
    a(valu("v_add_u32", vXD[2], 2 * (9216 - 1024), vXD[0]))
    a(valu("v_add_u32", vXD[3], 2 * (9216 - 1024), vXD[1]))
    a(salu("s_mul_i32", sXB, sRB, 147456))
    a(salu("s_lshl_b32", sM4, sW, 12))
    a(salu("s_lshl_b32", sM0B, sW, 11))
    return p

def x_read_setup(swap):
    p = []; a = p.append
    l = vLANE
    a(valu("v_and_b32", vX0, 31, l)); a(valu("v_lshlrev_b32", vX0, 7, vX0))
    a(salu("s_lshl_b32", sT[0], sR2, 13)); a(salu("s_add_u32", sT[0], sT[0], hex(BLK)))
    a(valu("v_add_u32", vX0, sT[0], vX0))
    a(valu("v_bfe_u32", vX1, l, 1, 3)); a(valu("v_lshrrev_b32", vX2, 5, l)); a(valu("v_xor_b32", vX1, vX1, vX2))
    if swap:
        a(salu("s_lshl_b32", sT[1], sR2, 1)); a(valu("v_xor_b32", vX1, sT[1], vX1))
    a(salu("s_lshl_b32", sT[0], sC2, 12))
    for tt in range(4):
        a(valu("v_xor_b32", vX2, 2 * tt, vX1))
        a(valu("v_lshl_add_u32", vXR[tt], vX2, 4, vX0))
        a(valu("v_add_u32", vXO[tt], sT[0], vXR[tt]))
    return p

def tr_base(dst_g8, dst_g4):
    p = []; a = p.append
    l = vLANE
    a(valu("v_and_b32", vX0, 3, l)); a(valu("v_lshlrev_b32", vX0, 3, vX0))
    a(valu("v_bfe_u32", vX1, l, 4, 1)); a(valu("v_lshl_add_u32", vX0, vX1, 5, vX0))
    a(valu("v_bfe_u32", vX1, l, 2, 2)); a(valu("v_lshl_add_u32", vX0, vX1, 7, vX0))
    a(valu("v_bfe_u32", vX1, l, 3, 1)); a(valu("v_xor_b32", vX1, sC2, vX1)); a(valu("v_lshl_add_u32", vX0, vX1, 6, vX0))
    a(valu("v_lshrrev_b32", vX2, 5, l))
    if dst_g8 is not None: a(valu("v_lshl_add_u32", dst_g8, vX2, 10, vX0))
    if dst_g4 is not None: a(valu("v_lshl_add_u32", dst_g4, vX2, 9, vX0))
    return p

def dma_voff(dst, stride):
    p = []; a = p.append
    a(valu("v_bfe_u32", vX2, vTID, 3, 3))
    a(valu("v_lshrrev_b32", vX1, 6, vTID))
    a(valu("v_lshl_add_u32", vX2, vX1, 4, vX2))
    a(valu("v_mul_u32_u24", vX2, stride, vX2))
    a(valu("v_bfe_u32", vX1, vTID, 4, 1))
    a(valu("v_lshlrev_b32", vX1, 2, vX1))
    a(valu("v_and_b32", vX0, 7, vTID))
    a(valu("v_xor_b32", vX0, vX0, vX1))
    a(valu("v_lshl_add_u32", dst[0], vX0, 4, vX2))
    a(valu("v_add_u32", dst[1], hex(8 * stride - 1024), dst[0]))
    return p

def touch(voff, srd_, soff, off=0, dst=None):
    i = buf_ld(dst or vDUM, voff, srd_, soff, off=off); i.wr = []
    return i

def ones_sel(dst):
    p = [raw("s_mov_b32 vcc_lo, 0x00020001", SALU), raw("s_mov_b32 vcc_hi, 0x00020001", SALU), valu("v_mov_b32", vX0, "0x3f803f80")]
    for j in range(4): p.append(I(f"v_cndmask_b32 {dst[j]}, 0, {vX0}, vcc", VALU, rd=[vX0], wr=[dst[j]]))
    return p

def stats_finish(S4, Q4, BX, rho, scale, t):
    p = []; a = p.append
    a(valu("v_add_f32", S4[0], S4[0], S4[1])); a(valu("v_add_f32", Q4[0], Q4[0], Q4[1]))
    a(valu("v_add_f32", S4[2], S4[2], S4[3])); a(valu("v_add_f32", Q4[2], Q4[2], Q4[3]))
    a(valu("v_add_f32", S4[0], S4[0], S4[2])); a(valu("v_add_f32", Q4[0], Q4[0], Q4[2]))
    a(valu("v_mov_b32", S4[1], S4[0])); a(valu("v_mov_b32", Q4[1], Q4[0]))
    for r in (S4, Q4): a(I(f"v_permlane32_swap_b32 {r[0]}, {r[1]}", VALU, rd=[r[0], r[1]], wr=[r[0], r[1]], perm=True))
    a(valu("v_add_f32", S4[0], S4[0], S4[1])); a(valu("v_add_f32", Q4[0], Q4[0], Q4[1]))
    s, q = S4[0], Q4[0]
    a(valu("v_mul_f32", s, f32(-1.0 / 576), s))
    a(valu("v_mul_f32", q, f32(1.0 / 576), q))
    a(I(f"v_fma_f32 {q}, -{s}, {s}, {q}", VALU, rd=[s, q], wr=[q]))
    a(valu("v_max_f32", q, 0, q)); a(valu("v_add_f32", q, f32(1e-5), q))
    a(trans("v_rsq_f32", rho, q))
    a(valu("v_cvt_pk_bf16_f32", t[0], s, s)); a(valu("v_and_b32", t[0], sMASK, t[0]))
    a(valu("v_mul_f32", q, q, rho))
    a(valu("v_sub_f32", t[1], s, t[0]))
    a(valu("v_cvt_pk_bf16_f32", BX[0], t[0], t[1]))
    a(valu("v_cvt_pk_bf16_f32", BX[1], t[0], q))
    a(valu("v_and_b32", t[0], sMASK, BX[1])); a(valu("v_sub_f32", t[1], q, t[0]))
    a(valu("v_cvt_pk_bf16_f32", BX[2], t[1], 0)); a(valu("v_mov_b32", BX[3], 0))
    if scale is not None: a(valu("v_mul_f32", rho, f32(scale), rho))
    return p

class Unit:
    def __init__(self, name, voff, srd_, sbase, const, m0b=None, fixed=None):
        self.m0b = m0b; self.fixed = fixed; self.cond = None; self.pool = None
        self.name, self.voff, self.srd, self.sbase, self.const = name, voff, srd_, sbase, const
        self.addr = None; self.first_read = 10**9; self.last_mfma = -1; self.dma_item = None; self.readers = []

class Builder:
    def __init__(self, D=6, dma_pace=3, m0b=None):
        self.m0b = m0b or sM0B
        self.M = []; self.afr = []; self.units = []; self.umap = {}
        self.D = D; self.dma_pace = dma_pace
        self.needs = {}; self.xuse = {}; self.fixed_reads = []
        self.xbias = 0; self.xb0 = 4; self.nfrag = 0; self.blackout = []; self.retire = None; self.retired = {}
    def unit(self, key, *args, **kw):
        if key not in self.umap:
            self.umap[key] = Unit(key, *args, **kw); self.units.append(self.umap[key])
        return self.umap[key]
    def next_a(self, unit, mk_reads):
        a = vA[self.nfrag % NA]; self.nfrag += 1
        self.afr.append((unit, mk_reads, a, len(self.M)))
        return a
    def add(self, m, new_a=False, unit=None):
        if new_a: m.tag = "newA"
        if unit is not None: unit.last_mfma = len(self.M)
        self.M.append(m)
    def need(self, idx, its): self.needs.setdefault(idx, []).extend(its)
    def xread(self, unit, gap, ins, name):
        def mk(u=unit, ins=ins):
            assert u.dma_item.pub is not None, (u.name, name, self.sc.gap)
            return [ins]
        it = Item(mk, MEM, 1, name=name); it.on_emit = lambda it, g: self.sc.to_publish.append(it)
        unit.first_read = min(unit.first_read, gap); unit.readers.append(it)
        self.fixed_reads.append((gap, it))
        return it
    def make_sched(self, bars, ring_units):
        sc = self.sc = Sched(self.M); sc.bars = set(bars)
        self.pro_reads = []
        for g, it in self.fixed_reads:
            if g < 0: self.pro_reads.append(it)
            else: sc.fix(g, it)
        for f, (u, mk, a, idx) in enumerate(self.afr):
            for h in range(2):
                def mk2(u=u, mk=mk, a=a, h=h):
                    assert u.addr is not None and u.dma_item.pub is not None, (u.name, sc.gap)
                    return [mk(a, h)]
                g = idx - self.D + h
                it = Item(mk2, MEM, 1, name=f"A{f}.{h}")
                u.first_read = min(u.first_read, g)
                if g < 0: self.pro_reads.append(it)
                else: sc.fix(g, it)
        self.units.sort(key=lambda u: u.first_read + (self.xbias if (u.name[0] == 'x' and u.name[1] >= self.xb0) else 0))
        ring = self.ring = LDSAlloc(ring_units); live = []
        def on_bar(g):
            for u in list(live):
                if u.last_mfma <= g:
                    live.remove(u)
                    if u.pool is not None: u.pool.put(u.addr)
                    elif self.retire is not None and self.retire(u.addr, g): self.retired[u.addr] = g
                    else: ring.put(u.addr)
        sc.on_bar.append(on_bar)
        sb = sorted(sc.bars)
        def unit_items(u, n):
            so = sSO[n & 1]
            i1 = item(salu("s_add_u32", so, u.sbase, u.const if isreg(u.const) else hex(u.const)), name=f"so{u.name}")
            def mk_m0(u=u):
                if u.fixed is not None: u.addr = u.fixed
                else: u.addr = (u.pool or ring).get(); live.append(u)
                return [salu("s_add_u32", "m0", u.m0b or self.m0b, hex(u.addr))]
            i2 = Item(mk_m0, PRE, 1, cond=(lambda g, u=u: u.cond(g) if u.cond else (u.fixed is not None or (u.pool or ring).avail())), name=f"m0{u.name}")
            its = [i1, i2]
            pb = [b for b in sb if b <= u.first_read]
            dl = (pb[-1] if pb else -1) - 12
            i2.deadline = i1.deadline = dl - len(u.voff)
            for k, vo in enumerate(u.voff):
                d = dma(vo, u.srd, so, off=1024 * k)
                i3 = Item(lambda d=d: [d], MEM, 2.0, name=f"dma{u.name}.{k}", deadline=dl - len(u.voff) + 1 + k)
                i3.cond = lambda g, i2=i2, i3=i3: i2.gap is not None and i2.gap < g and (g >= i3.deadline or not any(a <= g < b for a, b in self.blackout))
                its.append(i3)
            u.dma_item = its[-1]
            return its
        self.allu = [unit_items(u, n) for n, u in enumerate(self.units)]
        self.npro = 0
        return sc
    def next_dma(self):
        if self.npro >= len(self.allu): return []
        its = self.allu[self.npro]
        if not its[1].cond(-1): return []
        self.npro += 1
        o = []
        for it in its:
            it.ins = it.make(); it.gap = -1; o += it.ins
        return o
    def first_barrier(self, extra_lg=()):
        sc = self.sc
        fb = min(sc.bars); vm0 = []
        for u in self.units:
            if u.first_read < fb:
                assert u.dma_item.gap is not None, u.name
                vm0 += u.dma_item.ins; u.dma_item.pub = -1
        sc.dma_need = sorted([(u.first_read, u.dma_item) for u in self.units if u.dma_item.pub is None], key=lambda x: x[0])
        sc.add(Stream("dma", [it for its in self.allu[self.npro:] for it in its], pace=self.dma_pace, prio=True))
        return [wait_ops(vm_ops=vm0, lg_ops=list(extra_lg)), bar()]
    def x_units(self, xso, xf, rounds, copybuf, lead=5, nblk=4, blk0=0):
        xs = []; self.copy_reads = {}
        for U in range(9 * rounds):
            u = self.unit(("x", U), vXD, SRD_X, xso[U % 9], 0, m0b=sM4, fixed=BLK + (blk0 + U % nblk) * 16384)
            if U >= nblk: u.cond = lambda g, prev=xs[U - nblk]: all(r.pub is not None for r in prev.readers)
            for tt in range(4):
                for i in range(2):
                    r = self.xread(u, self.xuse[4 * U + tt] - lead + i, ds_rd(xf(4 * U + tt, i), vXR[tt], (blk0 + U % nblk) * 16384 + i * 4096), f"xr{U}.{tt}.{i}")
                    self.need(self.xuse[4 * U + tt], [r])
            if U < 9:
                self.copy_reads[U] = [self.xread(u, self.xuse[4 * U] + tt, ds_rd(copybuf[U & 1][4 * tt:4 * tt + 4], vXO[tt], (blk0 + U % nblk) * 16384), f"xc{U}.{tt}") for tt in range(4)]
            xs.append(u)
        return xs
    def stats_batches(self, copybuf, S4, Q4, gaps):
        for U in range(9):
            ins = []
            for k in range(16):
                r = copybuf[U & 1][k]; f = U == 0 and k < 4
                ins.append(valu("v_dot2_f32_bf16", S4[k & 3], r, sONE, 0 if f else S4[k & 3]))
                ins.append(valu("v_dot2_f32_bf16", Q4[k & 3], r, r, 0 if f else Q4[k & 3]))
            it = Item(lambda ins=ins: ins, LAST, 0, name=f"dots{U}")
            self.sc.fix(gaps[U], it)
    def release_blocks(self, last_user):
        pend = dict(last_user)
        def chk(g):
            for b, rs in list(pend.items()):
                if all(r.pub is not None for r in rs):
                    del pend[b]
                    for k in range(2): self.ring.put(BLK + b * 16384 + k * UNIT)
        self.sc.on_bar.append(chk)
    def y_stream(self, passes, vSTO, pace=3, slack=40):
        y_items = []; res = []
        for n, (acc, end, off) in enumerate(passes):
            st = sST[n & 1]; dl = end + slack
            if isreg(off):
                y_items.append(item(salu("s_lshl_b32", st, off, 5), earliest=end - 6, deadline=dl, name="yso"))
                y_items.append(item(salu("s_add_u32", st, st, sSTB), deadline=dl, name="yso"))
            else: y_items.append(item(salu("s_add_u32", st, sSTB, hex(off)), earliest=end - 4, deadline=dl, name="yso"))
            sts = []
            for i in range(2):
                for h in range(2):
                    b = 16 * i + 8 * h
                    for j in range(4):
                        y_items.append(item(valu("v_cvt_pk_bf16_f32", acc[b + j], acc[b + 2 * j], acc[b + 2 * j + 1]),
                                            earliest=end + 2, deadline=dl, name=f"ycvt{n}"))
                    s_ = item(buf_st(acc[b:b + 4], vSTO[i], SRD_WS, st, off=h * 1024, aux=Cfg.staux), deadline=dl, name=f"yst{n}")
                    s_.cost = 4
                    y_items.append(s_); sts.append(s_)
            res.append(sts)
        self.sc.add(Stream("y", y_items, pace=pace))
        return res
    def finish(self, P, name, verbose=True):
        for it in self.pro_reads:
            it.ins = it.make(); it.gap = -1; P += it.ins
            if it.on_emit: it.on_emit(it, -1)
        body = self.sc.run()
        for idx, its in self.needs.items():
            for it in its:
                assert it.gap is not None and it.gap < idx, f"need {it.name} before mfma {idx}, got {it.gap}"
        if verbose: print(f"{name}: mfma={len(self.M)} bars={len(self.sc.bars)} overflow_slots={self.sc.overflow:.0f} late={len(self.sc.late)}", self.sc.late[:4])
        return body

def code_touch():
    pc = S(82, 2)
    p = [raw("s_getpc_b64 s[82:83]", SALU, wr=[pc]), label("L_pc%d" % Cfg.pcn),
         raw("s_sub_u32 s82, s82, L_pc%d-%s" % (Cfg.pcn, Cfg.kname), SALU, rd=[pc], wr=[pc]), raw("s_subb_u32 s83, s83, 0", SALU, rd=[pc], wr=[pc]),
         salu("s_lshr_b32", sT[0], sWG, 3), salu("s_lshl_b32", sT[0], sT[0], 2), salu("s_add_u32", sT[0], sT[0], sW), salu("s_mul_i32", sT[0], sT[0], 7),
         valu("v_min_u32", vX0, 6, vLANE), valu("v_add_u32", vX0, sT[0], vX0), valu("v_lshlrev_b32", vX0, 7, vX0),
         I("v_min_u32 %s, L_codeend-%s-4, %s" % (vX0, Cfg.kname, vX0), VALU, rd=[vX0], wr=[vX0]),
         I(f"global_load_dword {vDUM}, {vX0}, s[82:83]", VMLD, rd=[vX0, pc])]
    Cfg.pcn += 1
    return p

def x_touch_addr():
    p = []; a = p.append
    a(salu("s_mul_i32", sT[2], sROLE, 288)); a(salu("s_mul_i32", sT[3], sW, 72)); a(salu("s_add_u32", sT[2], sT[2], sT[3]))
    a(valu("v_add_u32", V(44), sT[2], vLANE)); a(valu("v_lshlrev_b32", V(44), 7, V(44)))
    a(valu("v_min_u32", V(45), 7, vLANE)); a(valu("v_add_u32", V(45), sT[2], V(45))); a(valu("v_lshlrev_b32", V(45), 7, V(45))); a(valu("v_add_u32", V(45), 64 * 128, V(45)))
    return p
def x_touch(): return [touch(V(44), SRD_X, sXB, dst=V(46)), touch(V(45), SRD_X, sXB, dst=V(47))]

def seq(ins, e, d0, d1, name):
    groups = []; k = 0
    while k < len(ins):
        g = [ins[k]]
        while g[-1].t.startswith("s_cmp") and k + 1 < len(ins):
            k += 1; g.append(ins[k])
        while k + 1 < len(ins) and ins[k + 1].t.startswith(("s_cselect", "s_subb", "s_addc")):
            k += 1; g.append(ins[k])
        groups.append(g); k += 1
    n = len(groups)
    return [Item(lambda g=g: g, VAL, sum(x.cost for x in g), earliest=e, deadline=d0 + ((d1 - d0) * k) // max(1, n), name=name) for k, g in enumerate(groups)]
```

```python
from common import *
import fin

vTRe = [V(2), V(3)]; vTRo = [V(4), V(33)]; vTR2 = [V(5), V(6), V(7)]
vHW = V(13); vHR = V(14); vCSR = V(15); vCSW = V(32)
vD1 = [V(16), V(17)]; vD2 = [V(18), V(19)]; vSTO = [V(20), V(21)]
vRHO = [V(30), V(31)]
ACC = [V(208, 32), V(176, 32), V(144, 32), V(112, 32), V(64, 32)]
ONES = V(240, 4); CSD = [V(244, 4), V(108, 4)]; vBIAS = V(248, 6); BXT = [V(96, 4), V(100, 4)]; AXT = V(104, 4)
def xfrag(t, i): return A(4 * (2 * t + i), 4) if t < 32 else V(64 + 4 * (2 * (t - 32) + i), 4)
def hfrag(kk, i): return A(4 * (2 * kk + i), 4)
GC0 = -2.0 * math.sqrt(2.0 / math.pi) * math.log2(math.e)
GC1 = GC0 * 0.044715
GA = abs(GC1) ** (1.0 / 3.0)
GK = abs(GC0) / GA
GW = [2]
def gelu_items(acc, i, q):
    out = []
    b = 16 * i + 8 * q
    W = GW[0]
    T = [vT[0], vT[1], V(254), V(255)][:W]
    def nexp(t): return I(f"v_exp_f32_e64 {t}, -{t}", TRANS, rd=[t], wr=[t])
    for j in range(0, 8, W):
        X = [acc[b + j + k] for k in range(W)]
        out += [valu("v_mul_f32", x, x, vRHO[i]) for x in X]
        out += [valu("v_fma_f32", t, x, x, sC1) for x, t in zip(X, T)]
        out += [valu("v_mul_f32", t, x, t) for x, t in zip(X, T)]
        out += [nexp(t) for t in T]
        out += [valu("v_add_f32", t, "1.0", t) for t in T]
        out += [trans("v_rcp_f32", t, t) for t in T]
        out += [valu("v_mul_f32", t, x, t) for x, t in zip(X, T)]
        out += [valu("v_cvt_pk_bf16_f32", acc[b + (j + k) // 2], T[k], T[k + 1]) for k in range(0, W, 2)]
    return out

sXO = [S(84 + i) for i in range(9)]
def ffn_pre(rotK=True):
    p = []; a = p.append
    a(salu("s_mul_i32", sFS, sXH, 3)); a(salu("s_add_u32", sFS, sFS, sROLE)); a(salu("s_sub_u32", sFS, sFS, 1))
    a(salu("s_mul_i32", sB1, sFS, 768))
    p += dma_voff(vD1, 9216)
    return p

def build_ffn(N1=2, D=8, BARL=16, BARM=12, dma_pace=4, ypace=3, yslack=40, rotC=True, rotK=2, npre=4, npre2=6, DEL=10, DEL0=18,
              tlb=True, ctouch=True, gw=2, rotJ=True, rotT=0, xt=0, wt=0, SIGLAG=40, kill=(), AOFF=0, BOFF=8, SIGAT=12, F1AT=36, xbias=20, xb0=4, p0=1, verbose=True):
    GW[0] = gw
    M = []
    B = Builder(D, None); M = B.M
    sXO = [S(54 + i) for i in range(9)]; sKO = [S(24), S(25), S(26), S(27), S(63), S(64), S(65), S(66), S(67)]
    sCP = [S(70 + i) for i in range(9)]
    sFL = S(53); vFW = V(43); SD = SRD_B
    P0 = [salu("s_mul_i32", sT[4], sROLE, rotK)] + ([salu("s_add_u32", sT[4], sT[4], sJ8), raw(f"s_cmp_ge_u32 {sT[4]}, 9", SALU, rd=[sT[4]]), salu("s_cselect_b32", sT[3], 9, 0), salu("s_sub_u32", sT[4], sT[4], sT[3])] if rotJ else []) + rot_table(sXO[:2], sT[4], 9, 128, sXB, sT[1]) + rot_table(sKO[:2], sT[4], 9, 64 * 9216, sB1, sT[1])
    P = srd(SRD_X, sP[0:2], SLAB) + srd(SRD_W1, sP[8:10], 5308416)
    if xt: P += x_touch()
    if wt:
        a = P0.append
        a(valu("v_min_u32", vX3, 18 * wt - 1, vLANE))
        a(valu("v_mul_u32_u24", vX0, 57, vX3)); a(valu("v_lshrrev_b32", vX0, 10, vX0))
        a(valu("v_mul_u32_u24", vX1, 18, vX0)); a(valu("v_sub_u32", vX1, vX3, vX1))
        a(salu("s_mul_i32", sT[0], sW, 144)); a(salu("s_add_u32", sT[0], sT[0], sJ8))
        a(valu("v_lshl_add_u32", vX1, vX1, 3, sT[0])); a(valu("v_mul_u32_u24", vX1, 9216, vX1))
        a(valu("v_lshl_add_u32", V(48), vX0, 7, vX1))
        P.append(touch(V(48), SRD_W1, sB1, dst=V(49)))
    post = []; a = post.append
    post += rot_table(sXO, sT[4], 9, 128, sXB, sT[1])
    post += srd(SRD_B, sP[10:12], 9216) + srd(SRD_W2, sP[12:14], 5308416) + srd(SRD_WS, sP2[2:4], 64 << 20)
    post += rot_table(sKO, sT[4], 9, 64 * 9216, sB1, sT[1])
    post2 = []; a = post2.append
    post2 += [salu("s_mov_b32", sONE, "0x3f803f80"), salu("s_mov_b32", sMASK, "0xffff0000"), salu("s_mov_b32", sC1, f32(GK))]
    post2 += x_read_setup(True) + tr_base(vTRe[0], vTR2[0])
    a(salu("s_lshl_b32", sT[0], sR2, 11))
    a(valu("v_subrev_u32", vTRo[0], sT[0], vTRe[0])); a(valu("v_add_u32", vTRe[0], sT[0], vTRe[0]))
    a(valu("v_add_u32", vTRe[1], hex(65536), vTRe[0])); a(valu("v_add_u32", vTRo[1], hex(65536), vTRo[0]))
    for k in (1, 2): a(valu("v_add_u32", vTR2[k], hex(65536 * k), vTR2[0]))
    post2 += ones_sel(ONES)
    post3 = []; a = post3.append
    a(valu("v_lshlrev_b32", vX0, 1, vLANE)); a(valu("v_mov_b32", vX3, OOB))
    a(I(f"v_cmp_gt_u32 vcc, 32, {vLANE}", VALU, rd=[vLANE], wr=["vcc"]))
    a(salu("s_lshl_b32", sT[0], sC2, 6)); a(salu("s_add_u32", sT[0], sT[0], sB1))
    a(valu("v_cndmask_b32", vX0, vX3, vX0, "vcc", rd_extra=["vcc"]))
    for s in range(6): a(buf_ld(vBIAS[s], vX0, SRD_B, sT[0], off=128 * s, op="buffer_load_ushort"))
    post3 += srd(SD, sP2[0:2], 256)
    post3 += dma_voff(vD2, 1152)
    a(salu("s_mul_i32", sB2, sFS, 384 * 1152))
    if rotC: post3 += rot_table(sCP, sJ8, 9, 128, sB2, sT[1])
    a(salu("s_mul_i32", sSTB, sFS, SLAB)); a(salu("s_add_u32", sSTB, sSTB, sXB))
    if tlb:
        a(valu("v_min_u32", vX0, 1, vTID))
        a(valu("v_mul_u32_u24", vX1, 442368 - 4, vX0)); a(valu("v_mul_u32_u24", vX2, 147456 - 4, vX0))
        a(touch(vX1, SRD_W2, sB2)); a(touch(vX2, SRD_WS, sSTB))
    if rotC:
        a(salu("s_lshl_b32", sT[0], sB2, 5)); a(salu("s_sub_u32", sSTB, sSTB, sT[0]))
    a(valu("v_lshlrev_b32", vX1, 4, vLANE))
    a(salu("s_add_u32", sT[0], sM4, hex(BLK))); a(valu("v_add_u32", vHW, sT[0], vX1))
    a(salu("s_lshl_b32", sT[0], sR2, 13)); a(salu("s_add_u32", sT[0], sT[0], hex(BLK))); a(valu("v_add_u32", vHR, sT[0], vX1))
    a(salu("s_mul_i32", sT[0], sR2, 2 * 36864)); a(salu("s_lshl_b32", sT[1], sC2, 11)); a(salu("s_add_u32", sT[0], sT[0], sT[1]))
    a(valu("v_add_u32", vSTO[0], sT[0], vX1)); a(valu("v_add_u32", vSTO[1], 36864, vSTO[0]))
    a(salu("s_lshl_b32", sT[0], sC2, 8)); a(salu("s_add_u32", sT[0], sT[0], T_CS))
    a(valu("v_lshl_add_u32", vCSR, vLANE, 2, sT[0]))
    a(salu("s_lshl_b32", sT[1], sR2, 7)); a(valu("v_add_u32", vCSW, sT[1], vCSR))
    a(I(f"v_cmp_gt_u32 vcc, 16, {vLANE}", VALU, rd=[vLANE], wr=["vcc"]))
    a(valu("v_cndmask_b32", vCSW, vX3, vCSW, "vcc", rd_extra=["vcc"]))
    a(valu("v_mov_b32", AXT[3], 0))
    fs_, zst = fin.flag_setup(SD, vFW, vX0, sFL, [salu("s_mov_b32", sT[2], sFS)]); post3 += fs_

    step_start = {}; step_end = {}; huse = {}; ext_at = {}; cs_last = {}
    pend_ext = []
    def maybe_ext():
        while pend_ext and len(M) >= pend_ext[0][1]:
            s, _ = pend_ext.pop(0); acc = ACC[s % 3]; ext_at[s] = len(M)
            for i in range(2): B.add(mfma32(acc[16 * i:16 * i + 16], AXT, BXT[i], acc[16 * i:16 * i + 16]))
    def pair(u, mk, acc, bfr, first):
        maybe_ext()
        idx = len(M)
        a_ = B.next_a(u, mk)
        for i in range(2): B.add(mfma32(acc[16 * i:16 * i + 16], a_, bfr[i], 0 if first else acc[16 * i:16 * i + 16]), i == 0, u)
        return a_, idx
    xlast5 = {}
    for s in range(6):
        for t in range(36):
            u = B.unit(("w1", s, t >> 2), vD1, SRD_W1, sKO[t >> 2], s * 128)
            def mk(av, h, u=u, t=t):
                ad = u.addr + (t & 3) * 2048 + h * 512
                return ds_tr(av[2 * h:2 * h + 2], (vTRo if t & 1 else vTRe)[ad >> 16], ad & 0xffff)
            a_, idx = pair(u, mk, ACC[s % 3], [xfrag(t, 0), xfrag(t, 1)], t == 0)
            if t == 0: step_start[s] = idx
            B.xuse.setdefault(t, idx); xlast5[t] = idx + 1
            if t % 2 == 0:
                cs_last[s] = len(M); B.add(mfma16(CSD[s & 1], ONES, a_, CSD[s & 1] if t else 0), False, u)
        step_end[s] = len(M) - 1
        pend_ext.append((s, len(M) + (DEL if s else DEL0)))
    pacc = {}; order = [0, 3, 4, 1, 2]
    pass_end = {}; pass_start = {}
    groups = [list(range(N1))] + [[cp] for cp in range(N1, 9)]
    for grp in groups:
        for cp in grp: pacc[cp] = ACC[order[cp % 5]]
        for kk in range(24):
            for cp in grp:
                u = B.unit(("w2", cp, kk >> 2), vD2, SRD_W2, sCP[cp], (kk >> 2) * 64 * 1152)
                def mk(av, h, u=u, kk=kk):
                    ad = u.addr + (kk & 3) * 2048 + h * 1024
                    return ds_tr(av[2 * h:2 * h + 2], vTR2[ad >> 16], ad & 0xffff)
                a_, idx = pair(u, mk, pacc[cp], [hfrag(kk, 0), hfrag(kk, 1)], kk == 0)
                huse.setdefault(kk, idx); pass_start.setdefault(cp, idx); pass_end[cp] = idx + 1
    must = [B.xuse[4 * U] - D for U in range(1, 9)] + [ext_at[s] - 6 for s in range(6)] + [step_start[5] + 13]
    must = sorted(set(must)); bars = []
    end = len(M) - 8
    for k, b in enumerate(must + [end]):
        if bars:
            lim = BARL if (bars[-1] < step_start[5] or bars[-1] > pass_end[N1 - 1]) else BARM
            while b - bars[-1] > lim + lim // 4:
                n = -(-(b - bars[-1]) // lim); bars.append(bars[-1] + (b - bars[-1]) // n if bars[-1] < step_start[5] else bars[-1] + lim)
                lim = BARL if (bars[-1] < step_start[5] or bars[-1] > pass_end[N1 - 1]) else BARM
        if b != end: bars.append(b)
    CB = [V(112, 16), V(128, 16)]; S4 = V(144, 4); Q4 = V(148, 4)
    xs = B.x_units(sXO, xfrag, 1, CB)
    B.xbias = xbias; B.xb0 = xb0
    B.dma_pace = lambda g: p0 if g < step_end[0] - 10 else dma_pace
    sc = B.make_sched(bars, [k * UNIT for k in range(1, 12)])
    sb = sorted(bars)
    for _ in range(npre): P += B.next_dma()
    P += post
    if ctouch:
        ct = code_touch(); P += ct
    for _ in range(2): P += B.next_dma()
    P += post2
    for _ in range(npre2 - npre - 2): P += B.next_dma()
    P += B.first_barrier()
    pub = lambda it, g: sc.to_publish.append(it)
    P3 = seq(post3, 2, 10, 60, "p3")
    B.stats_batches(CB, S4, Q4, [B.xuse[4 * U] + 8 for U in range(9)])
    e0 = B.xuse[32] + 9
    sf = stats_finish(S4, Q4, BXT[0], vRHO[0], GA, [vT[2], vT[3]])
    sf += [valu("v_lshlrev_b32", vT[2], 4, vTID), valu("v_and_b32", vT[3], 31, vLANE), salu("s_lshl_b32", sT[0], sW, 7), valu("v_lshl_add_u32", vT[3], vT[3], 2, sT[0])]
    SF = [Item(lambda ins=ins: [ins], VAL, ins.cost, earliest=e0, deadline=ext_at[0] - 10, name="sf") for ins in sf]
    wr = [item(ds_wr(vT[2], BXT[0], T_BX), deadline=ext_at[0] - 9, name="bxw"), item(ds_wr(vT[3], vRHO[0], T_RHO), deadline=ext_at[0] - 9, name="rhow")]
    for w in wr: w.on_emit = pub
    ad2 = [salu("s_lshl_b32", sT[0], sC2, 10), valu("v_subrev_u32", vT[2], sT[0], vT[2]), salu("s_lshl_b32", sT[0], sC2, 7), valu("v_subrev_u32", vT[3], sT[0], vT[3])]
    AD2 = [Item(lambda ins=ins: [ins], VAL, ins.cost, deadline=ext_at[0] - 8, name="ad2") for ins in ad2]
    rd = [item(ds_rd(BXT[i], vT[2], T_BX + 1024 * i), deadline=ext_at[0] - 5, name="bxr") for i in range(2)]
    rd += [item(ds_rd(vRHO[i], vT[3], T_RHO + 128 * i), deadline=ext_at[0] - 5, name="rhor") for i in range(2)]
    rd[0].cond = lambda g: all(w.pub is not None for w in wr)
    B.need(ext_at[0], rd); B.need(step_start[2], SF)
    ini = [wait_ops(vm_ops=[zst]), salu("s_lshl_b32", sT[0], sRB, 2)] + fin.dbg_add(SD, sT[0], 0, vT[2], vT[3])
    ini += [I("s_load_dwordx4 s[80:83], s[0:1], 56", SMEM, wr=[S(80, 4)]), valu("v_lshlrev_b32", vT[2], 7, vLANE), valu("v_min_u32", vT[2], 1024, vT[2]),
            I(f"global_load_dword {vDUM}, {vT[2]}, s[80:81]", VMLD, rd=[vT[2], S(80, 2)])]
    INI = [Item(lambda x=x: [x], VAL, x.cost, earliest=ext_at[0] + 20, deadline=ext_at[0] + 30, name="ini") for x in ini]
    sc.add(Stream("setup", P3 + SF + wr + AD2 + rd + INI))
    CS = []
    for s in range(6):
        d = CSD[s & 1]; o = (s & 1) * 128
        w = item(I(f"ds_write2_b32 {vCSW}, {d[0]}, {d[1]} offset0:{o} offset1:{o+16}", LDSW, rd=[vCSW, d[0], d[1]], cost=2), earliest=cs_last[s] + 3, deadline=ext_at[s] - 8, name=f"csw{s}")
        w.on_emit = pub
        r = item(ds_rd(vT[4], vCSR, (s & 1) * 512), deadline=ext_at[s] - 6, name=f"csr{s}"); r.cond = lambda g, w=w: w.pub is not None
        bl = [valu("v_lshlrev_b32", vT[5], 16, vBIAS[s]), valu("v_mov_b32", AXT[2], vBIAS[s]),
              valu("v_cvt_pk_bf16_f32", AXT[0], vT[4], vT[4]), valu("v_and_b32", AXT[1], sMASK, AXT[0]), valu("v_sub_f32", vT[4], vT[4], AXT[1]),
              valu("v_cvt_pk_bf16_f32", AXT[1], vT[4], vT[5])]
        BL = [item(x, earliest=ext_at[s] - 3, deadline=ext_at[s] - 2, name=f"ax{s}") for x in bl]
        CS += [w, r] + BL; B.need(ext_at[s], BL)
    sc.add(Stream("cs", CS))
    last_user = {b: xs[max(U for U in range(9) if U % 4 == b)].readers for b in range(4)}
    h_w = {}; g_items = []; hr_items = []
    for s in range(6):
        acc = ACC[s % 3]
        b = (s + 1) % 4
        prev = last_user[b]
        ws_ = []
        nxt = step_start[s + 3] - 2 if s + 3 < 6 else 10**9
        pb = [x for x in sb if x <= huse[4 * s] - 4]
        dl = min(nxt, pb[-1] - 3)
        if s + 1 < 6: dl = min(dl, ext_at[s + 1] + 24)
        for i in range(2):
            for q in range(2):
                d2 = dl - 3 * (3 - (2 * i + q))
                for ins in gelu_items(acc, i, q): g_items.append(item(ins, earliest=ext_at[s] + i + 2, deadline=d2 - 1, name=f"g{s}"))
                w = item(ds_wr(vHW, acc[16 * i + 8 * q:16 * i + 8 * q + 4], b * 16384 + i * 2048 + q * 1024), deadline=d2, name=f"hw{s}.{i}.{q}")
                w.cond = lambda g, prev=prev: all(r.pub is not None for r in prev)
                w.on_emit = pub
                ws_.append(w); g_items.append(w)
        h_w[s] = ws_
        if s + 3 < 6: B.need(step_start[s + 3], ws_)
        rs = []
        for c in range(2):
            for q in range(2):
                kk = 4 * s + 2 * c + q
                for i in range(2):
                    r = item(ds_rd(hfrag(kk, i), vHR, b * 16384 + c * 4096 + i * 2048 + q * 1024),
                             earliest=xlast5[kk], deadline=huse[kk] - 3, name=f"hr{kk}.{i}")
                    r.cond = lambda g, ws_=ws_: all(w.pub is not None for w in ws_)
                    r.on_emit = pub
                    rs.append(r); B.need(huse[kk], [r])
        hr_items += rs
        last_user[b] = rs
        if s + 4 < 6:
            for r in rs: r.deadline = min(r.deadline, step_start[5] + 11 + 24 * s)
    B.release_blocks(last_user)
    sc.add(Stream("gelu", g_items)); sc.add(Stream("hr", hr_items))
    sts = B.y_stream([(pacc[cp], pass_end[cp], sCP[cp] if rotC else cp * 4096) for cp in range(9)], vSTO, pace=ypace, slack=yslack)
    for cp in range(9):
        if cp >= 5: B.need(pass_start[cp], sts[cp - 5])
        else:
            o = order[cp % 5]
            if o < 3: B.need(pass_start[cp], h_w[max(s for s in range(6) if s % 3 == o)])
    FG = []
    for grp, cp in ((1, 2), (2, 5)):
        g0 = pass_end[cp] + SIGLAG
        gb = min(x for x in sb if x > g0)
        wv = item(wait_ops(vm_ops=[x.make()[0] for c in range(cp + 1) for x in sts[c]]), earliest=gb - 1, deadline=gb - 1, name="sigw")
        wv.cond = lambda g, cp=cp: all(x.gap is not None for x in sts[cp])
        fs2 = fin.flag_store(grp, vFW, vT[5], sFL)
        FG += [wv, item(fs2[0], earliest=gb - 1, deadline=gb - 1, name="sigv"), item(fs2[1], earliest=gb, deadline=gb, name="sig")]
        B.need(gb, [wv])
    sc.add(Stream("sig", FG))
    vNF, vND, vFA, vDA, vF, vD = fin.vNF, fin.vND, fin.vFA, fin.vDA, fin.vF, fin.vD
    gA = pass_start[6] + AOFF; gB = pass_start[8] + BOFF
    wt_a, wt_i = fin.wof_touch(fin.vWT, fin.sWT, vDUM)
    S0 = seq(fin.owner_setup() + wt_a, pass_start[N1] + 4, pass_start[N1] + 30, pass_start[4], "sa")
    S0[0].cond = lambda g: all(x.gap is not None and x.gap < g for x in h_w[5])
    SAi = S0 + [item(x, earliest=pass_start[4] + 4 * k, deadline=pass_start[4] + 4 * k + 3, name="xb") for k, x in enumerate(fin.xb_loads())]
    fl = fin.flag_loads(vF, vD, vFA, vDA, sFL, SD)
    SAi.append(item(fl[0], deadline=gA - 45, name="dld"))
    SAi.append(item(wait_ops(regs_ready=[vD]), earliest=gA - 22, deadline=gA - 22, name="dw"))
    SAi.append(item(fl[1], earliest=gA - 22, deadline=gA - 22, name="fld"))
    ck = fin.check("L_fa", vF, vD, vNF, vND, vFA, vDA, sFL, SD, True)
    SAi.append(Item(lambda: ck, VAL, 8, earliest=gA, deadline=gA, name="chk"))
    SAi.append(item(wt_i(), earliest=gA + 2, deadline=gA + 2, name="wt"))
    lds_ = []; ACA = []
    for i in range(12):
        pl = fin.pload(0, i, fin.LP)
        it = item(pl[0], earliest=gA + 3 + 3 * i, deadline=gA + 5 + 3 * i, name="ald"); lds_.append(it)
        if i == 0: it.cond = lambda g: all(x.gap is not None and x.gap < g for x in sts[4])
        SAi.append(it); SAi.append(item(pl[1], name="aso"))
        xs_ = [item(x, earliest=gA + 36 + 3 * i, deadline=gB - 2, name="aacc") for x in fin.acc_plain(fin.YA, fin.LP[i], i == 0, vT[4])]
        xs_[0].cond = lambda g, it=it: it.gap is not None and it.gap < g
        ACA += xs_
    for n in range(fin.NPF):
        for x in fin.aload(n): SAi.append(item(x, earliest=gA + 44 + 3 * n, deadline=gB - 22, name="apf"))
    SAi += seq(fin.set_need(vNF, 2, 0, vT[5]), gB - 24, gB - 21, gB - 21, "nb")
    SAi.append(item(buf_ld(vF, vFA, SRD_WS, sFL, aux="sc1"), earliest=gB - 20, deadline=gB - 20, name="fld2"))
    ck2 = fin.check1("L_fb", vF, vNF, vFA, sFL)
    SAi.append(Item(lambda: ck2, VAL, 8, earliest=gB, deadline=gB, name="chk2"))
    for i in range(12):
        pl = fin.pload(1, i, fin.LP)
        it = item(pl[0], earliest=gB + 1 + 3 * i, deadline=gB + 3 + 3 * i, name="bld")
        if i == 0: it.cond = lambda g: ACA[-1].gap is not None and ACA[-1].gap < g
        SAi.append(it); SAi.append(item(pl[1], name="bso"))
    for it in SAi:
        if it.name in kill: it.make = lambda: []
    sc.add(Stream("stA", SAi)); sc.add(Stream("accA", ACA))
    pro_stamp = stamp()
    for g in (step_end[5], len(M) - 1):
        for ins in stamp(): sc.fix(g, Item(lambda ins=ins: [ins], PRE, 1))
    body = B.finish(P, "FFN", verbose)
    P += pro_stamp
    body += fin.final(sFL, vFW, [x.ins[0] for c in range(9) for x in sts[c]], 1.0 / GA, SIGAT, F1AT)
    return P0, P, body
```

```python
from common import *
OOFF = 32 << 20
WOFF = 36 << 20
FLOFF = 44 << 20
GA_INV = None
sK = S(29)
YA = V(96, 8)
DB_INIT = 0
DB_WOF = 64
DB_KV = 128

def flag_setup(SD, vFW, vz, sFL, kreg_ins):
    p = list(kreg_ins); a = p.append
    a(salu("s_lshl_b32", sFL, sRB, 7)); a(salu("s_add_u32", sFL, sFL, hex(FLOFF)))
    a(salu("s_lshl_b32", sT[2], sT[2], 2)); a(valu("v_mov_b32", vFW, sT[2])); a(valu("v_mov_b32", vz, OOB))
    a(I(f"v_cmp_eq_u32 vcc, 0, {vTID}", VALU, rd=[vTID], wr=["vcc"]))
    a(valu("v_cndmask_b32", vFW, vz, vFW, "vcc", rd_extra=["vcc"])); a(valu("v_mov_b32", vz, 0))
    st = buf_st(vz, vFW, SRD_WS, sFL, aux="sc1"); a(st)
    return p, st
def dbg_add(SD, soff, off, va, vb):
    return [valu("v_lshlrev_b32", va, 12, vTID), valu("v_mov_b32", vb, 1),
            I(f"buffer_atomic_add {vb}, {va}, {SD}, {soff} offen offset:{off}", VMST, rd=[vb, va, SD] + ([soff] if isreg(soff) else []))]
def flag_store(val, vFW, v, sFL): return [valu("v_mov_b32", v, val), buf_st(v, vFW, SRD_WS, sFL, aux="sc1")]

def need_regs(vNF, vND, vFA, vDA, nf, na, wof):
    p = []; a = p.append
    a(valu("v_min_u32", vFA, 15, vLANE)); a(valu("v_lshlrev_b32", vFA, 2, vFA))
    a(valu("v_mov_b32", vNF, na)); a(valu("v_mov_b32", vND, nf))
    a(I(f"v_cmp_gt_u32 vcc, 12, {vLANE}", VALU, rd=[vLANE], wr=["vcc"])); a(valu("v_cndmask_b32", vNF, vNF, vND, "vcc", rd_extra=["vcc"]))
    a(salu("s_lshl_b32", sT[0], sRB, 2)); a(valu("v_mov_b32", vDA, sT[0])); a(valu("v_mov_b32", vND, DB_WOF))
    a(I(f"v_cmp_eq_u32 vcc, 1, {vLANE}", VALU, rd=[vLANE], wr=["vcc"])); a(valu("v_cndmask_b32", vDA, vDA, vND, "vcc", rd_extra=["vcc"]))
    a(valu("v_mov_b32", vND, wof)); a(I(f"v_cndmask_b32 {vND}, 16, {vND}, vcc", VALU, rd=[vND, "vcc"], wr=[vND]))
    return p
def flag_loads(vF, vD, vFA, vDA, sFL, SD, tracked=True):
    o = [buf_ld(vD, vDA, SD, 0, aux="sc1"), buf_ld(vF, vFA, SRD_WS, sFL, aux="sc1")]
    if not tracked:
        for i in o: i.k = OTHER; i.wr = []
    return o
def check(name, vF, vD, vNF, vND, vFA, vDA, sFL, SD, first_loaded, w0only=False):
    c = sT[1]
    p = [salu("s_mov_b32", c, 0)]
    if w0only: p += [raw(f"s_cmp_lg_u32 {sW}, 0", SALU, rd=[sW]), raw(f"s_cbranch_scc1 {name}_x")]
    if not first_loaded: p.append(raw(f"s_branch {name}_l"))
    else: p.append(wait_ops(regs_ready=[vF, vD]))
    p += [label(name),
          I(f"v_cmp_ge_u32 vcc, {vF}, {vNF}", VALU, rd=[vNF], wr=["vcc"]), I(f"v_cmp_ge_u32 s[36:37], {vD}, {vND}", VALU, rd=[vND], wr=[S(36, 2)]), nop(3),
          raw("s_and_b64 vcc, vcc, s[36:37]", SALU), raw("s_cmp_eq_u64 vcc, -1", SALU), raw(f"s_cbranch_scc1 {name}_x"),
          raw("s_sleep 3"), label(name + "_l")]
    l = flag_loads(vF, vD, vFA, vDA, sFL, SD, tracked=False)
    p += [l[0], raw("s_waitcnt vmcnt(0)"), l[1]]
    p += [salu("s_add_u32", c, c, 1), raw(f"s_cmp_ge_u32 {c}, 0x100000", SALU, rd=[c]), raw("s_waitcnt vmcnt(0)"), raw(f"s_cbranch_scc0 {name}"), label(name + "_x")]
    return p

def check1(name, vF, vNF, vFA, sFL):
    c = sT[1]
    l = buf_ld(vF, vFA, SRD_WS, sFL, aux="sc1"); l.k = OTHER; l.wr = []
    return [salu("s_mov_b32", c, 0), wait_ops(regs_ready=[vF]), label(name),
            I(f"v_cmp_ge_u32 vcc, {vF}, {vNF}", VALU, rd=[vNF], wr=["vcc"]), nop(3), raw("s_cmp_eq_u64 vcc, -1", SALU), raw(f"s_cbranch_scc1 {name}_x"),
            raw("s_sleep 2"), l, salu("s_add_u32", c, c, 1), raw(f"s_cmp_ge_u32 {c}, 0x100000", SALU, rd=[c]), raw("s_waitcnt vmcnt(0)"),
            raw(f"s_cbranch_scc0 {name}"), label(name + "_x")]
def wof_touch(v, t, dst):
    return [salu("s_lshr_b32", t, sWG, 3), salu("s_lshl_b32", t, t, 2), salu("s_add_u32", t, t, sW), salu("s_mul_i32", t, t, 54 * 128), salu("s_add_u32", t, t, hex(WOFF - 32 * 54 * 128)),
            valu("v_min_u32", v, 53, vLANE), valu("v_lshlrev_b32", v, 7, v)], (lambda: touch(v, SRD_WS, t, dst=dst))
def acquire(): return I("buffer_inv sc1", VMST)
def _sc1(i): i.t += " sc1"; return i

def set_need(vNF, nf, na, t):
    return [valu("v_mov_b32", t, na), valu("v_mov_b32", vNF, nf), I(f"v_cmp_gt_u32 vcc, 12, {vLANE}", VALU, rd=[vLANE], wr=["vcc"]),
            valu("v_cndmask_b32", vNF, t, vNF, "vcc", rd_extra=["vcc"])]
def acc_plain(dst, src, first, t):
    o = []
    for j in range(4):
        if first: o += [valu("v_lshlrev_b32", dst[2 * j], 16, src[j]), valu("v_and_b32", dst[2 * j + 1], sMASK, src[j])]
        else: o += [valu("v_lshlrev_b32", t, 16, src[j]), valu("v_and_b32", src[j], sMASK, src[j]),
                    valu("v_add_f32", dst[2 * j], dst[2 * j], t), valu("v_add_f32", dst[2 * j + 1], dst[2 * j + 1], src[j])]
    return o
def acc_dot(dst, src, first, slo, shi):
    o = []
    for j in range(4):
        o.append(valu("v_dot2_f32_bf16", dst[2 * j], src[j], slo, 0 if first else dst[2 * j]))
        o.append(valu("v_dot2_f32_bf16", dst[2 * j + 1], src[j], shi, 0 if first else dst[2 * j + 1]))
    return o

SO = S(8, 4); SB = S(24, 4); SX = SRD_X
PB = [S(54), S(55), S(56)]; WB = [S(57), S(58), S(59)]; XB = [S(60), S(61), S(62)]; BB = [S(63), S(64), S(65)]; sOB = S(66); sWT = S(67)
vNF, vND, vFA, vDA, vF, vD, vL, vWT = [V(22 + i) for i in range(8)]
vXA, vOA, vBA = V(30), V(31), V(32)
XRa = [A(192 + 4 * u, 4) for u in range(3)]; BRa = [A(204 + 4 * u, 4) for u in range(3)]
NPF = 10
def AFr(n): return A(216 + 4 * n, 4) if n < NPF else A(4 * (n - NPF), 4)
LP = [V(144 + 4 * i, 4) for i in range(8)] + [V(240 + 4 * i, 4) for i in range(4)]
Y = [YA, V(104, 8), V(112, 8)]

def owner_setup():
    p = []; a = p.append
    p += need_regs(vNF, vND, vFA, vDA, 1, 0, 64)
    a(salu("s_and_b32", sT[2], sK, 3)); a(salu("s_mul_i32", sT[2], sT[2], 36864)); a(salu("s_add_u32", sT[2], sT[2], sXB))
    a(salu("s_mul_i32", sT[0], sW, 9216)); a(salu("s_add_u32", sOB, sT[2], sT[0])); a(salu("s_add_u32", sOB, sOB, hex(OOFF)))
    for u in range(3):
        a(salu("s_lshr_b32", sT[0], sK, 2)); a(salu("s_add_u32", sT[0], sT[0], sJ8)); a(salu("s_add_u32", sT[0], sT[0], 3 * u))
        a(raw(f"s_cmp_ge_u32 {sT[0]}, 9", SALU, rd=[sT[0]])); a(salu("s_cselect_b32", sT[1], 9, 0)); a(salu("s_sub_u32", sT[0], sT[0], sT[1]))
        a(salu("s_lshl_b32", sT[0], sT[0], 2)); a(salu("s_add_u32", sT[0], sT[0], sW))
        a(salu("s_lshl_b32", PB[u], sT[0], 10)); a(salu("s_add_u32", PB[u], PB[u], sT[2]))
        a(salu("s_mul_i32", WB[u], sT[0], 18432)); a(salu("s_add_u32", WB[u], WB[u], hex(WOFF)))
        a(salu("s_lshl_b32", BB[u], sT[0], 5)); a(salu("s_add_u32", XB[u], BB[u], sT[2]))
    a(valu("v_lshlrev_b32", vL, 4, vLANE))
    a(valu("v_and_b32", vOA, 31, vLANE)); a(valu("v_mul_u32_u24", vOA, 1152, vOA)); a(valu("v_lshrrev_b32", vBA, 5, vLANE))
    a(valu("v_lshl_add_u32", vXA, vBA, 3, vOA)); a(valu("v_lshl_add_u32", vOA, vBA, 4, vOA)); a(valu("v_lshlrev_b32", vBA, 3, vBA))
    p += srd(SB, S(80, 2), 1152) + srd(SO, S(82, 2), SLAB)
    return p
def xb_loads():
    return [x for u in range(3) for x in (buf_ld(BRa[u][0:2], vBA, SB, BB[u]), buf_ld(BRa[u][2:4], vBA, SB, BB[u], off=16),
                                          buf_ld(XRa[u][0:2], vXA, SX, XB[u]), buf_ld(XRa[u][2:4], vXA, SX, XB[u], off=16))]
def pload(u, i, L): return [buf_ld(L[i], vL, SRD_WS, PB[u], aux="sc1"), salu("s_add_u32", PB[u], PB[u], hex(SLAB))]
def aload(n):
    t, u = n // 3, n % 3
    return [buf_ld(AFr(n), vL, SRD_WS, WB[u], off=1024 * (t & 3), aux=Cfg.wofaux)] + ([salu("s_add_u32", WB[u], WB[u], 4096)] if t & 3 == 3 else [])

def final(sFL, vFW, last_stores, ga_inv, SIGAT=12, F1AT=36):
    E = []; a = E.append
    a(salu("s_mov_b32", S(78), "0x00003f80")); a(salu("s_mov_b32", S(79), "0x3f800000")); a(salu("s_mov_b32", sC1, f32(ga_inv)))
    sig = [wait_ops(vm_ops=last_stores), bar()] + flag_store(3, vFW, vT[3], sFL)
    SA = [V(120, 8), V(128, 8), V(136, 8)]; TX = [V(208, 8), V(216, 8), V(224, 8)]
    def gpart(u):
        o = []; b = o.append
        y = Y[u]; T = TX[u]; R = V(232, 4)
        for j in range(4): b(valu("v_accvgpr_read_b32", R[j], BRa[u][j]))
        o += acc_plain(T, R, True, None)
        for j in range(8): b(valu("v_fma_f32", y[j], y[j], sC1, T[j]))
        for j in range(8): b(valu("v_mul_f32", T[j], f32(-math.log2(math.e)), y[j]))
        for j in range(8): b(trans("v_exp_f32", T[j], T[j]))
        for j in range(4): b(valu("v_accvgpr_read_b32", R[j], XRa[u][j]))
        for j in range(8): b(valu("v_add_f32", T[j], "1.0", T[j]))
        for j in range(8): b(trans("v_rcp_f32", T[j], T[j]))
        for j in range(8): b(valu("v_mul_f32", y[j], y[j], T[j]))
        o += acc_plain(T, R, True, None)
        return o
    fill = set_need(vNF, 0, 1, vT[0]) + gpart(0)
    for i in range(12): fill += acc_dot(Y[1], LP[i], i == 0, S(78), S(79))
    fill += gpart(1)
    per = -(-len(fill) // 22); fk = 0
    for k, n in enumerate(range(NPF, 54)):
        if k == SIGAT: E += sig; E += stamp()
        if k == F1AT: a(buf_ld(vF, vFA, SRD_WS, sFL, aux="sc1"))
        E += aload(n)
        if k % 2 == 1: E += fill[fk:fk + per]; fk += per
    E += fill[fk:]
    E += stamp()
    E += check1("L_fo", vF, vNF, vFA, sFL)
    od = []
    a(salu("s_mul_i32", sT[0], sW, 9216))
    for k in range(9):
        if k % 4 == 0:
            a(salu("s_add_u32", "m0", sT[0], 1024 * k)); a(salu("s_add_u32", sSO[(k // 4) & 1], sOB, 1024 * k))
        d = dma(vL, SRD_WS, sSO[(k // 4) & 1], off=1024 * (k & 3)); d.t = d.t.replace(" lds", " sc1 lds"); a(d); od.append(d)
    E += set_need(vNF, 3, 1, vT[0])
    E += check1("L_fc", vF, vNF, vFA, sFL)
    for i in range(12): E += pload(2, i, LP)
    a(wait_ops(vm_ops=od)); a(bar())
    E += stamp()
    BF = [V(64 + 4 * k, 4) for k in range(6)]
    rd = lambda n: ds_rd(BF[n % 6], vL, (n & 1) * 18432 + (n >> 1) * 1024)
    fill = []
    for i in range(12): fill += acc_plain(Y[2], LP[i], i == 0, vT[1])
    fill += gpart(2)
    for n in range(4): a(rd(n))
    fk = 0
    for n in range(36):
        t, nt = n >> 1, n & 1
        for u in range(3):
            d = SA[u][4 * nt:4 * nt + 4]
            a(mfma16(d, AFr(3 * t + u), BF[n % 6], d if t else 0))
            if u == 0 and n + 4 < 36: a(rd(n + 4))
            if n >= 2:
                c = 1 if u == 0 else 2
                E += fill[fk:fk + c]; fk += c
    E += fill[fk:]
    for u in range(3):
        sx = SA[u]
        for r in range(4): a(I(f"v_permlane16_swap_b32 {sx[r]}, {sx[r+4]}", VALU, rd=[sx[r], sx[r + 4]], wr=[sx[r], sx[r + 4]], perm=True))
    for u in range(3):
        y = Y[u]; sx = SA[u]; O = V(176 + 4 * u, 4)
        for j in range(8): a(valu("v_fma_f32", y[j], y[j], sx[j], TX[u][j]))
        for j in range(4): a(valu("v_cvt_pk_bf16_f32", O[j], y[2 * j], y[2 * j + 1]))
    for u in range(3):
        O = V(176 + 4 * u, 4)
        for j in range(2): a(I(f"v_permlane32_swap_b32 {O[j]}, {O[j+2]}", VALU, rd=[O[j], O[j + 2]], wr=[O[j], O[j + 2]], perm=True))
    E += stamp()
    for u in range(3): a(buf_st(V(176 + 4 * u, 4), vOA, SO, XB[u]))
    return E
```

```python
import sys
sys.path.insert(0, "gen2")
from common import *
import ffn

KNAME = "recurrent_scan__linear_attn_block__dense_activation_gelu__prompt_kernel"

def k1_entry():
    p = []; a = p.append
    a(raw("s_cmp_ge_u32 s2, 256", SALU)); a(raw("s_cbranch_scc1 L_end"))
    a(I("s_load_dwordx16 s[64:79], s[0:1], 0", SMEM, wr=[sP]))
    a(I("s_load_dwordx4 s[80:83], s[0:1], 72", SMEM, wr=[sP2]))
    p += stamp() + rstamp(10)
    a(valu("v_readfirstlane_b32", sW, V(0)))
    a(salu("s_and_b32", sT[0], sWG, 7))
    a(salu("s_lshr_b32", sT[1], sWG, 3))
    a(salu("s_and_b32", sJ8, sT[1], 7))
    a(salu("s_and_b32", sRB, sT[0], 1)); a(salu("s_lshl_b32", sRB, sRB, 3)); a(salu("s_add_u32", sRB, sRB, sJ8))
    a(salu("s_lshr_b32", sROLE, sT[1], 3))
    a(salu("s_lshr_b32", sXH, sT[0], 1))
    a(salu("s_lshr_b32", sW, sW, 6))
    a(salu("s_lshr_b32", sR2, sW, 1)); a(salu("s_and_b32", sC2, sW, 1))
    p += entry_lane_setup()
    a(raw(f"s_cmp_eq_u32 {sROLE}, 0", SALU, rd=[sROLE])); a(raw("s_cbranch_scc1 L_attn"))
    return p

def ffn_entry():
    return ffn.ffn_pre() + [wait(lg=0)]

def kd(name, v, acc, sg=102):
    return f""".p2align 6
.amdhsa_kernel {name}
  .amdhsa_next_free_vgpr {v}
  .amdhsa_next_free_sgpr {sg}
  .amdhsa_accum_offset {acc}
  .amdhsa_group_segment_fixed_size 0
  .amdhsa_kernarg_size 88
  .amdhsa_user_sgpr_count 2
  .amdhsa_user_sgpr_kernarg_segment_ptr 1
  .amdhsa_system_sgpr_workgroup_id_x 1
.end_amdhsa_kernel"""

def build(path, **kw):
    import attn
    st = {}
    Stamps.on = kw.get("stamps", False); Stamps.n = 0; Cfg.pcn = 0
    head = k1_entry()
    P0, P, body = ffn.build_ffn(**kw.get("ffn", {}))
    drop = kw.get("drop", ())
    if drop: body = [i for i in body if not (i.k in drop and (i.k != VALU or '_f32' in i.t.split()[0]))]
    body = body + stamp_dump()
    f = finalize(head + ffn.ffn_pre() + P0 + [wait(lg=0)] + P + body, st)
    print("ffn finalize:", st, "est total", estimate(f), "est body", estimate(finalize(body)), "ninstr", len(f))
    st2 = {}
    ap = attn.build_attn(**kw.get("attn", {}))
    af = finalize(head + ap, st2)[len(finalize(head)):]
    print("attn finalize:", st2, "est", estimate(af), "ninstr", len(af))
    hdr = open("recurrent_scan__linear_attn_block__dense_activation_gelu__prompt.s.ref").read().split("; Override launch")[0]
    out = [hdr.rstrip(),
           f"; @launch grid=(256,1,1) block=(256,1,1) lds=163840",
           '.amdgcn_target "amdgcn-amd-amdhsa--gfx950"', ".text",
           f".globl {KNAME}", ".p2align 8", f".type {KNAME},@function", f"{KNAME}:",
           text(f), "L_end:", "  s_endpgm", ".p2align 6", "L_attn:", text(af), "  s_endpgm",
           "L_codeend:",
           '.section .rodata,"a"', kd(KNAME, 512, 256)]
    open(path, "w").write("\n".join(out) + "\n")
    import re
    L = [l.strip() for l in "\n".join(out).splitlines() if l.strip() and not l.startswith(";")]
    for i, l in enumerate(L):
        if l.startswith(("s_cselect", "s_cbranch_scc", "s_subb", "s_addc")):
            j = i - 1
            while not re.match(r"s_(cmp|add|sub|and|or|xor|lshl|lshr|min|max|bfe|andn2|not)", L[j]) or L[j].startswith(("s_subb", "s_addc")): j -= 1
            assert L[j].startswith("s_cmp") or (l.startswith("s_subb") and L[j].startswith("s_sub_u32")), (L[j], l)

if __name__ == "__main__":
    if len(sys.argv) > 2 and sys.argv[2] == "r": Stamps.op = "s_memrealtime"
    build(sys.argv[1] if len(sys.argv) > 1 else "recurrent_scan__linear_attn_block__dense_activation_gelu__prompt.s", stamps=len(sys.argv) > 2)
```
